```python
import torch

def _softmax(x, axis=-1):
    return torch.softmax(x, dim=axis)

def _gelu(x):
    return torch.nn.functional.gelu(x, approximate='tanh')

def _silu(x):
    return torch.nn.functional.silu(x)

def _sigmoid(x):
    return torch.sigmoid(x)

def _layernorm(x, axis=-1, eps=1e-05):
    m = x.mean(dim=axis, keepdim=True)
    v = x.var(dim=axis, keepdim=True, unbiased=False)
    return (x - m) / torch.sqrt(v + eps)

def _scatter_add(tgt, idx, src, axis=0):
    return tgt.clone().index_add_(axis, idx, src)

def _segment_sum(src, seg, n):
    out = torch.zeros((n,) + src.shape[1:], dtype=src.dtype)
    return out.index_add_(0, seg, src)

def _pad(x, pw):
    flat = tuple((v for pair in reversed(pw) for v in pair))
    return torch.nn.functional.pad(x, flat)
kernel_name = 'recurrent_scan__spectral_gfnet__mixer_gmlp__prompt'

def setup_inputs():

    _w = lambda a: (lambda t: t.to(torch.bfloat16) if t.is_floating_point() else t)(torch.as_tensor(a))

    def _A_setup():
        B, S, D = (1, 2048, 448)
        Df = D // 2 + 1
        return {'x': _w((lambda *s: torch.randn(*s, dtype=torch.bfloat16) * 0.05)(B, S, D)), 'w_r': _w((lambda *s: torch.randn(*s, dtype=torch.bfloat16) * 0.2)(S, Df) * 0.02), 'w_i': _w((lambda *s: torch.randn(*s, dtype=torch.bfloat16) * 0.2)(S, Df) * 0.02)}
    _A_in = _A_setup()

    def _B_setup():
        B, S, D, F = (1, 2048, 448, 1792)
        Fh = F // 2
        return {'x': _w((lambda *s: torch.randn(*s, dtype=torch.bfloat16) * 0.05)(B, S, D)), 'w_in': _w((lambda *s: torch.randn(*s, dtype=torch.bfloat16) * 0.4)(D, 2 * Fh)), 'w_sp': _w(0.01 * (lambda *s: torch.randn(*s, dtype=torch.bfloat16) * 0.4)(S, S)), 'b_sp': _w(1.0 + 0.01 * (lambda *s: torch.randn(*s, dtype=torch.bfloat16) * 0.1)(S)), 'w_out': _w((lambda *s: torch.randn(*s, dtype=torch.bfloat16) * 0.1)(Fh, D))}
    _B_in = _B_setup()
    return {'A_x': _A_in['x'], 'A_w_r': _A_in['w_r'], 'A_w_i': _A_in['w_i'], 'B_x': _B_in['x'], 'B_w_in': _B_in['w_in'], 'B_w_sp': _B_in['w_sp'], 'B_b_sp': _B_in['b_sp'], 'B_w_out': _B_in['w_out']}

def reference(A_x, A_w_r, A_w_i, B_x, B_w_in, B_w_sp, B_b_sp, B_w_out):

    def _A_ref(x, w_r, w_i):
        B, S, D = x.shape
        X = (lambda x, axes=(-2, -1): torch.fft.rfft2(x.float(), dim=axes))(x, axes=(-2, -1))
        W = w_r + 1j * w_i
        X = X * W
        y = (lambda x, s, axes=(-2, -1): torch.fft.irfft2(x, s=s, dim=axes).to(torch.bfloat16))(X, (S, D), axes=(-2, -1))
        return y

    def _B_ref(x, w_in, w_sp, b_sp, w_out):
        B, S, D = x.shape
        F = w_in.shape[-1]
        Fh = F // 2
        z = _gelu(torch.einsum('bsd,df->bsf', x, w_in))
        z1 = z[..., :Fh].clone()
        z2 = _layernorm(z[..., Fh:], axis=-1)
        g = torch.einsum('ts,bsf->btf', w_sp, z2) + b_sp[None, :, None]
        return torch.einsum('bsf,fd->bsd', z1 * g, w_out)
    x = A_x
    xn = _layernorm(x, axis=-1)
    s = _A_ref(xn, A_w_r, A_w_i)
    g = _silu(_B_ref(xn, B_w_in, B_w_sp, B_b_sp, B_w_out))
    return x + s * g
```

```python
import re

TRANS = ("v_exp_f32", "v_log_f32", "v_rcp_f32", "v_rsq_f32", "v_sqrt_f32", "v_sin_f32", "v_cos_f32", "v_rcp_iflag_f32")

def _regs(tok):
    tok = tok.strip()
    tok = re.sub(r"^-", "", tok)
    m = re.match(r"^abs\((.*)\)$", tok)
    if m: tok = m.group(1)
    m = re.match(r"^\|(.*)\|$", tok)
    if m: tok = m.group(1)
    m = re.match(r"^([vsa])\[(\d+):(\d+)\]$", tok)
    if m:
        return {(m.group(1), i) for i in range(int(m.group(2)), int(m.group(3)) + 1)}
    m = re.match(r"^([vsa])(\d+)$", tok)
    if m:
        return {(m.group(1), int(m.group(2)))}
    if tok in ("vcc", "vcc_lo", "vcc_hi"): return {("vcc", 0)}
    if tok in ("exec", "exec_lo", "exec_hi"): return {("exec", 0)}
    if tok == "m0": return {("m0", 0)}
    return set()

class Ins:
    __slots__ = ("text", "op", "ops", "w", "r", "cls", "passes", "srcc", "srcab", "ws", "mods", "sdata")
    def __init__(self, text):
        self.text = text
        t = text.split(";")[0].strip()
        parts = t.split(None, 1)
        self.op = parts[0]
        rest = parts[1] if len(parts) > 1 else ""
        ops = []; cur = ""; depth = 0
        for ch in rest:
            if ch in "[(": depth += 1
            if ch in "])": depth -= 1
            if ch == "," and depth == 0:
                ops.append(cur.strip()); cur = ""
            else: cur += ch
        if cur.strip(): ops.append(cur.strip())
        self.mods = ""
        if ops:
            l = ops[-1].split(None, 1)
            ops[-1] = l[0]
            if len(l) > 1: self.mods = l[1]
        self.ops = ops
        self.w = set(); self.r = set(); self.passes = 0; self.srcc = set(); self.srcab = set(); self.sdata = set()
        self.ws = 1
        op = self.op
        R = [_regs(o) for o in ops]
        allr = set().union(*R) if R else set()
        if op == "s_nop":
            self.cls = "nop"; self.ws = int(ops[0], 0) + 1
        elif op.startswith("v_mfma"):
            self.cls = "mfma"
            self.w = R[0]; self.srcab = R[1] | R[2]; self.srcc = R[3]; self.r = self.srcab | self.srcc
            self.passes = 8 if "32x32x16" in op else 4
        elif op.startswith("v_permlane") and "swap" in op:
            self.cls = "valu"; self.w = R[0] | R[1]; self.r = R[0] | R[1]
        elif op.startswith("v_cmp"):
            self.cls = "valu"; self.w = R[0]; self.r = set().union(*R[1:])
            if op.startswith("v_cmpx"): self.w = self.w | {("exec", 0)}
        elif op.startswith("v_"):
            self.cls = "valu"; self.w = set(R[0]); self.r = set().union(*R[1:]) if len(R) > 1 else set()
            if op.startswith(("v_add_co", "v_sub_co", "v_addc_co", "v_subb_co", "v_subrev_co")):
                self.w |= R[1]; self.r = set().union(*R[2:])
            if op.startswith(("v_fmac", "v_dot2c", "v_pk_fmac")): self.r |= R[0]
            if op.startswith("v_cndmask") and len(ops) == 3: self.r |= {("vcc", 0)}
            if "dpp" in op or "row_" in self.mods or "quad_perm" in self.mods: self.r |= R[0]
        elif op.startswith(("buffer_load", "global_load")):
            self.cls = "vmem"
            if "lds" in self.mods.split() or "_lds_" in op:
                self.r = allr | {("m0", 0)}; self.cls = "vmemlds"
            else:
                self.w = R[0]; self.r = set().union(*R[1:])
        elif op.startswith(("buffer_store", "global_store", "buffer_atomic", "global_atomic")):
            self.cls = "vmem"; self.r = allr
            if op.startswith("buffer_"): self.sdata = R[0]
            else: self.sdata = R[1]
        elif op.startswith(("ds_read", "ds_bpermute", "ds_permute", "ds_swizzle")):
            self.cls = "ds"; self.w = R[0]; self.r = set().union(*R[1:])
        elif op.startswith("ds_"):
            self.cls = "ds"; self.r = allr
        elif op.startswith(("s_load", "s_buffer_load", "s_memtime", "s_memrealtime")):
            self.cls = "smem"; self.w = R[0]; self.r = set().union(*R[1:]) if len(R) > 1 else set()
        elif op.startswith(("s_cmp", "s_cbranch", "s_branch", "s_barrier", "s_waitcnt", "s_endpgm", "s_sleep", "s_setprio", "s_bitcmp")):
            self.cls = "salu"; self.r = allr
        elif op.startswith("s_"):
            self.cls = "salu"; self.w = set(R[0]); self.r = set().union(*R[1:]) if len(R) > 1 else set()
            if "saveexec" in op: self.w |= {("exec", 0)}
        elif op.startswith("buffer_"):
            self.cls = "vmem"
        else:
            raise ValueError("unknown instr " + text)

def need(p, c):
    n = 0
    vw = {x for x in p.w if x[0] in "va"}
    if p.cls == "valu":
        isdot = p.op.startswith("v_dot")
        if c.cls == "mfma" and (vw & c.r): n = max(n, 3 if isdot else 2)
        if p.op.startswith(TRANS) and c.cls == "valu" and not c.op.startswith(TRANS) and (vw & c.r): n = max(n, 1)
        if p.op.startswith(TRANS) and c.cls in ("vmem", "ds") and (vw & c.r): n = max(n, 1)
        if c.op.startswith("v_permlane") and (vw & c.r): n = max(n, 2)
        if c.op.startswith(("v_readfirstlane", "v_readlane")) and (vw & c.r): n = max(n, 1)
        if ("dpp" in c.op or "row_" in c.mods or "quad_perm" in c.mods) and (vw & c.r): n = max(n, 2)
        if ("sdwa" in p.op or "op_sel" in p.mods) and not p.op.startswith("v_pk") and c.cls == "valu" and (vw & (c.r | c.w)): n = max(n, 1)
        sw = {x for x in p.w if x[0] in ("s", "vcc")}
        if sw:
            if c.cls == "valu" and (sw & c.r): n = max(n, 4 if c.op.startswith(("v_readlane", "v_writelane")) else 2)
            if c.cls in ("vmem", "vmemlds") and (sw & c.r): n = max(n, 5)
            if c.cls in ("salu", "smem") and (sw & c.r): n = max(n, 2)
            if c.op.startswith("s_cbranch_vcc") and ("vcc", 0) in sw: n = max(n, 5)
        if ("exec", 0) in p.w:
            if c.cls in ("valu", "mfma"): n = max(n, 5)
        if isdot:
            if c.op == p.op:
                ab = _regs(c.ops[1]) | _regs(c.ops[2])
                if vw & ab: n = max(n, 3)
            elif vw & (c.r | c.w): n = max(n, 3)
    if p.cls == "mfma":
        P = p.passes
        if c.cls == "mfma":
            if p.w & c.srcab: n = max(n, P + 4)
            if p.w & c.srcc:
                if not (p.w == c.srcc and p.passes == c.passes): n = max(n, P + 2)
            if (p.w & c.w) and not (p.w == c.srcc): n = max(n, P + 4)
        else:
            if p.w & (c.r | c.w): n = max(n, P + 4)
            if c.cls == "valu" and (p.srcc & c.w): n = max(n, P - 1)
            if c.cls in ("ds", "vmem") and (p.srcc & c.w): n = max(n, P - 1)
    if p.cls == "salu" and ("m0", 0) in p.w and c.cls == "vmemlds": n = max(n, 1)
    if p.cls == "vmem" and p.sdata and ("x4" in p.op or "x3" in p.op):
        if p.sdata & c.w: n = max(n, 2)
    return n

class Asm:
    def __init__(self):
        self.items = []
        self._lbl = 0
    def __call__(self, s):
        for l in s.strip("\n").split("\n"):
            l = l.strip()
            if not l: continue
            if l.endswith(":") or l.startswith(".") or l.startswith(";"):
                self.items.append(l)
            else:
                self.items.append(Ins(l))
    def label(self, name): self.items.append(name + ":")
    def newlabel(self, p="L"):
        self._lbl += 1
        return "%s_%d" % (p, self._lbl)
    def extend(self, other): self.items.extend(other.items)
    def auto(self, on): self.items.append(";@auto %d" % (1 if on else 0))
    def text(self):
        out = []
        hist = []
        pos = 0
        lg = []; vm = []
        auto = True
        def emit(it):
            nonlocal pos, hist
            req = 0
            for (p, ppos) in hist:
                d = pos - ppos - 1
                if d >= 20: continue
                n = need(p, it)
                if n - d > req: req = n - d
            while req > 0:
                k = min(req, 16)
                out.append("  s_nop %d" % (k - 1))
                pos += k; req -= k
            out.append("  " + it.text)
            hist.append((it, pos + it.ws - 1))
            pos += it.ws
            if len(hist) > 40: hist = hist[-40:]
        for it in self.items:
            if isinstance(it, str):
                if it.startswith(";@auto"):
                    auto = it.endswith("1"); lg = []; vm = []
                    continue
                out.append(it)
                continue
            if it.op == "s_waitcnt":
                m = re.search(r"lgkmcnt\((\d+)\)", it.text)
                if m:
                    n = int(m.group(1)); lg = lg[len(lg) - n:] if n < len(lg) and n > 0 else ([] if n == 0 else lg)
                m = re.search(r"vmcnt\((\d+)\)", it.text)
                if m:
                    n = int(m.group(1)); vm = vm[len(vm) - n:] if n < len(vm) and n > 0 else ([] if n == 0 else vm)
            elif auto:
                touch = it.r | it.w
                w = []
                for name, lst, mx in (("lgkmcnt", lg, 15), ("vmcnt", vm, 63)):
                    idx = -1
                    for i, d in enumerate(lst):
                        if d & touch: idx = i
                    if idx >= 0:
                        n = min(len(lst) - 1 - idx, mx)
                        w.append("%s(%d)" % (name, n))
                        del lst[:len(lst) - n]
                if w: emit(Ins("s_waitcnt " + " ".join(w)))
            emit(it)
            if it.cls == "ds": lg.append(set(it.w))
            elif it.cls in ("vmem", "vmemlds"): vm.append(set(it.w))
        return "\n".join(out) + "\n"

def interleave(main, side, ratio):
    res = Asm()
    si = 0
    acc = 0.0
    for it in main.items:
        res.items.append(it)
        if isinstance(it, Ins) and it.cls == "mfma":
            acc += ratio
            while acc >= 1 and si < len(side.items):
                res.items.append(side.items[si]); si += 1; acc -= 1
    res.items.extend(side.items[si:])
    return res

HEADER = """.amdgcn_target "amdgcn-amd-amdhsa--gfx950"
.text
"""
def kernel_begin(name):
    return ".globl %s\n.p2align 8\n.type %s,@function\n%s:\n" % (name, name, name)
def kernel_desc(name, vgpr, sgpr, accum):
    return """.amdhsa_kernel %s
  .amdhsa_next_free_vgpr %d
  .amdhsa_next_free_sgpr %d
  .amdhsa_accum_offset %d
  .amdhsa_group_segment_fixed_size 0
  .amdhsa_kernarg_size 88
  .amdhsa_user_sgpr_count 2
  .amdhsa_user_sgpr_kernarg_segment_ptr 1
  .amdhsa_system_sgpr_workgroup_id_x 1
  .amdhsa_float_denorm_mode_32 3
  .amdhsa_float_denorm_mode_16_64 3
.end_amdhsa_kernel
""" % (name, vgpr, sgpr, accum)
```

```python
import numpy as np
from asmlib import *

S, D, FH = 2048, 448, 896
WS_Z1 = 0x0000000
WS_Z2 = 0x0400000
WS_YT = 0x0800000
WS_WT = 0x0A00000
WS_U  = 0x0C00000
WS_ZT = 0x1000000
WS_ST = 0x1200000
WS_WMAX = 0x1300000
WS_SC = 0x1310000
WS_SIZE = 0x1400000
YSTR = 4224

def f32_to_bf16_bits(x):
    x = np.asarray(x, dtype=np.float32)
    u = x.view(np.uint32).astype(np.uint64)
    r = (u + 0x7FFF + ((u >> 16) & 1)) >> 16
    return r.astype(np.uint16)
def bf16_bits_to_f32(b):
    return (np.asarray(b).astype(np.uint32) << 16).view(np.float32)
def f32bits(x):
    return int(np.float32(x).view(np.uint32))

def col_k(cp):
    if cp == 0: return 0, 0
    if cp == 1: return 224, 0
    return cp // 2, cp & 1

def srd(a, base, lo, nbytes):
    a("s_mov_b32 s%d, s%d" % (base, lo))
    a("s_and_b32 s%d, s%d, 0xffff" % (base + 1, lo + 1))
    a("s_mov_b32 s%d, %d" % (base + 2, nbytes))
    a("s_mov_b32 s%d, 0x20000" % (base + 3))

def divmod7(a, q, r, src):
    a("s_mul_hi_u32 s%d, s%d, 0x24924925" % (q, src))
    a("s_mul_i32 s%d, s%d, 7" % (r, q))
    a("s_sub_u32 s%d, s%d, s%d" % (r, src, r))

def bf16_round(a, dst, src):
    a("v_cvt_pk_bf16_f32 v%d, v%d, v%d" % (dst, src, src))
    a("v_lshlrev_b32 v%d, 16, v%d" % (dst, dst))

def ln_finish(a, vsum, vsq, n, vm, vr, t0, t1):
    a("v_mul_f32 v%d, 0x%08x, v%d" % (t0, f32bits(1.0 / n), vsum))
    a("v_mul_f32 v%d, 0x%08x, v%d" % (t1, f32bits(1.0 / n), vsq))
    a("v_fma_f32 v%d, -v%d, v%d, v%d" % (t1, t0, t0, t1))
    a("v_max_f32 v%d, 0, v%d" % (t1, t1))
    bf16_round(a, vm, t0)
    bf16_round(a, t1, t1)
    a("v_add_f32 v%d, 0x%08x, v%d" % (t1, f32bits(1e-5), t1))
    bf16_round(a, t1, t1)
    a("v_sqrt_f32 v%d, v%d" % (t1, t1))
    bf16_round(a, t1, t1)
    a("v_rcp_f32 v%d, v%d" % (vr, t1))

def half_sum(a, v, t):
    a("v_mov_b32 v%d, v%d" % (t, v))
    a("v_permlane32_swap_b32 v%d, v%d" % (v, t))
    a("v_add_f32 v%d, v%d, v%d" % (v, v, t))

TAB_T1 = 0
TAB_T2 = 401408
TAB_CST = 802816
TAB_FFT = 804864
FFT_F1 = 0; FFT_F2 = 6144; FFT_TWF = 30720; FFT_TWI = 47104; FFT_BYTES = 63488
TAB_SIZE = TAB_FFT + FFT_BYTES

A1, A2, A3, A4, A5 = 1 / 16., 1 / 8., 1 / 8., 1 / 8., 1 / 8.

def cos448():
    return np.cos(2 * np.pi * np.arange(448) / 448.0)

def t1_model():
    c = bf16_bits_to_f32(f32_to_bf16_bits(cos448().astype(np.float32)))
    T = np.zeros((448, 448), np.float32)
    d = np.arange(448)
    for cp in range(448):
        k, im = col_k(cp)
        T[cp] = c[(k * d + 112 * im) % 448]
    return T
def t2_model():
    c = cos448().astype(np.float16).astype(np.float32)
    T = np.zeros((448, 448), np.float32)
    d = np.arange(448)
    for cp in range(448):
        k, im = col_k(cp)
        T[cp] = c[(k * d + 112 * im) % 448]
    return T

def kappa(g, h, j):
    return 16 * g + 8 * (j // 4) + 4 * h + (j % 4)

def fft_tables():
    out = bytearray()
    def frag(N, tile, g, fn):
        f = np.zeros((64, 8), np.float16)
        for l in range(64):
            i, h = l % 32, l // 32
            for j in range(8):
                f[l, j] = fn(2 * np.pi * (((32 * tile + i) * kappa(g, h, j)) % N) / N)
        return f.tobytes()
    fns = [np.cos, np.sin, lambda t: -np.sin(t)]
    for fn in fns:
        for g in range(2): out += frag(32, 0, g, fn)
    assert len(out) == FFT_F2
    for fn in fns:
        for tile in range(2):
            for g in range(4): out += frag(64, tile, g, fn)
    assert len(out) == FFT_TWF
    for mt in range(2):
        for q in range(4):
            for fn in (np.cos, np.sin):
                f = np.zeros((64, 4), np.float32)
                for l in range(64):
                    for i in range(4):
                        n2 = 32 * mt + 8 * q + 4 * (l // 32) + i
                        f[l, i] = fn(2 * np.pi * ((n2 * (l % 32)) % 2048) / 2048) * A2
                out += f.tobytes()
    assert len(out) == FFT_TWI
    for nt in range(2):
        for q in range(4):
            for fn in (np.cos, np.sin):
                f = np.zeros((64, 4), np.float32)
                for l in range(64):
                    for i in range(4):
                        k1 = 8 * q + 4 * (l // 32) + i
                        f[l, i] = fn(2 * np.pi * (((32 * nt + l % 32) * k1) % 2048) / 2048) * A4
                out += f.tobytes()
    assert len(out) == FFT_BYTES
    return bytes(out)

def tables_asm():
    L = []
    cb = f32_to_bf16_bits(cos448().astype(np.float32))
    ch = cos448().astype(np.float16).view(np.uint16)
    for i in range(448):
        L.append(".set XB_%d, %d\n.set XH_%d, %d" % (i, cb[i], i, ch[i]))
    L.append(r"""
.altmacro
.macro eb8 p0,p1,p2,p3,p4,p5,p6,p7
.short XB_\p0, XB_\p1, XB_\p2, XB_\p3, XB_\p4, XB_\p5, XB_\p6, XB_\p7
.endm
.macro eh8 p0,p1,p2,p3,p4,p5,p6,p7
.short XH_\p0, XH_\p1, XH_\p2, XH_\p3, XH_\p4, XH_\p5, XH_\p6, XH_\p7
.endm
.p2align 8
tab0:
; T1: [cg][kc][e][lane][8]: c' = 32cg + lane%32 ; d = 64kc + 32(e/2) + 16h + 8(e%2) + j
.set tq, 0
.rept 14*7*4*64
.set tl, tq % 64
.set te, (tq / 64) % 4
.set tkc, (tq / 256) % 7
.set tcg, tq / 1792
.set tcp, 32*tcg + tl % 32
.set tk, tcp / 2
.set tim, tcp % 2
.if tcp == 1
.set tk, 224
.set tim, 0
.endif
.set td, 64*tkc + 32*(te/2) + 16*(tl/32) + 8*(te%2)
.set tb, tk*td + 112*tim
eb8 %(tb % 448), %((tb+tk) % 448), %((tb+2*tk) % 448), %((tb+3*tk) % 448), %((tb+4*tk) % 448), %((tb+5*tk) % 448), %((tb+6*tk) % 448), %((tb+7*tk) % 448)
.set tq, tq+1
.endr
; T2: [dt][stage][e][st][lane][8]: d = 64dt + 32st + lane%32 ; c' = 64 stage + 16e + 8h + j
.set tq, 0
.rept 7*7*4*2*64
.set tl, tq % 64
.set tst, (tq / 64) % 2
.set te, (tq / 128) % 4
.set tsg, (tq / 512) % 7
.set tdt, tq / 3584
.set td, 64*tdt + 32*tst + tl % 32
.set tk, (64*tsg + 16*te + 8*(tl/32)) / 2
.set tb, tk*td
.set tb1, tb + 112
.if tk == 0
.set tb1, 224*td
.endif
eh8 %(tb % 448), %(tb1 % 448), %((tb+td) % 448), %((tb+td+112) % 448), %((tb+2*td) % 448), %((tb+2*td+112) % 448), %((tb+3*td) % 448), %((tb+3*td+112) % 448)
.set tq, tq+1
.endr
.noaltmacro
""")
    cs = t1_model().astype(np.float64).sum(axis=1).astype(np.float32)
    cs = np.concatenate([cs, np.zeros(64, np.float32)])
    data = cs.tobytes() + fft_tables()
    w = np.frombuffer(data, np.uint32)
    for i in range(0, len(w), 8):
        L.append(".long " + ",".join("0x%x" % x for x in w[i:i + 8]))
    return "\n".join(L) + "\n"

import os
STAMPS = int(os.environ.get("STAMPS", "0"))
WS_DBG = 0x1320000
def stamp(a, idx, vreg=255, s0=90):
    if not STAMPS: return
    a("s_memrealtime s[%d:%d]" % (s0, s0 + 1))
    a("s_waitcnt lgkmcnt(0)")
    a("v_writelane_b32 v%d, s%d, %d" % (vreg, s0, idx))
def stamp_flush(a, kidx, swave, srdws, vreg=255, vt=254, s0=90, waveadd=0):
    if not STAMPS: return
    a("s_lshl_b32 s%d, s2, 3" % s0)
    a("s_add_u32 s%d, s%d, s%d" % (s0, s0, swave))
    if waveadd: a("s_add_u32 s%d, s%d, %d" % (s0, s0, waveadd))
    a("s_lshl_b32 s%d, s%d, 6" % (s0, s0))
    a("s_add_u32 s%d, s%d, %d" % (s0, s0, WS_DBG + kidx * 0x20000))
    a("v_mbcnt_lo_u32_b32 v%d, -1, 0" % vt)
    a("v_mbcnt_hi_u32_b32 v%d, -1, v%d" % (vt, vt))
    a("v_lshlrev_b32 v%d, 2, v%d" % (vt, vt))
    a("v_cmp_gt_u32 vcc, 64, v%d" % vt)
    a("s_and_saveexec_b64 s[%d:%d], vcc" % (s0 + 2, s0 + 3))
    a("buffer_store_dword v%d, v%d, s[%d:%d], s%d offen" % (vreg, vt, srdws, srdws + 3, s0))
    a("s_mov_b64 exec, s[%d:%d]" % (s0 + 2, s0 + 3))

def code_prefetch(a, start_label, end_label, sbase, vt, vdst, swg_shift=3, npieces=32, stmp=88):
    a("s_getpc_b64 s[%d:%d]" % (sbase, sbase + 1))
    a("s_add_u32 s%d, s%d, %s@rel32@lo+4" % (sbase, sbase, start_label))
    a("s_addc_u32 s%d, s%d, %s@rel32@hi+12" % (sbase + 1, sbase + 1, start_label))
    a("s_and_b32 s%d, s%d, 0xffff" % (sbase + 1, sbase + 1))
    a("s_mov_b32 s%d, %s-%s" % (sbase + 2, end_label, start_label))
    a("s_mov_b32 s%d, 0x20000" % (sbase + 3))
    a("s_lshr_b32 s%d, s2, %d" % (stmp, swg_shift))
    a("s_and_b32 s%d, s%d, %d" % (stmp, stmp, npieces - 1))
    a("s_lshl_b32 s%d, s%d, 10" % (stmp, stmp))
    a("v_lshlrev_b32 v%d, 4, v0" % vt)
    a("buffer_load_dwordx4 v[%d:%d], v%d, s[%d:%d], s%d offen" % (vdst, vdst + 3, vt, sbase, sbase + 3, stmp))

def stampc(a, idx, vreg=255, s0=90):
    if not STAMPS: return
    a("s_memtime s[%d:%d]" % (s0, s0 + 1))
    a("s_waitcnt lgkmcnt(0)")
    a("v_writelane_b32 v%d, s%d, %d" % (vreg, s0, idx))
```

```python
from common import *

L_W2 = 0
L_W1 = 57344
L_T1 = 114688
L_CS = 143360
L_MR = 143872
L_LN = 144896
K1_LDS = 145920

GC0 = -2.0 * np.sqrt(2.0 / np.pi) * np.log2(np.e)
GC1 = GC0 * 0.044715

sX, sWIN, sWS, sTAB, sDBG = 16, 20, 24, 28, 32
sWAVE, sCG, sRB, sROT = 36, 37, 38, 39
sKC = 40
sT = 48
sC0, sC1 = 64, 65

def gelu_stream(acc, csoff, vcs_addr, vnmr, vr, outregs, T, store=None):
    a = Asm()
    CS = [T, T + 4]
    X = T + 8; P = T + 12; E = T + 16
    groups = [(st, q) for st in range(2) for q in range(4)]
    def ldcs(i):
        st, q = groups[i]
        a("ds_read_b128 v[%d:%d], v%d offset:%d" % (CS[i % 2], CS[i % 2] + 3, vcs_addr, csoff + (32 * st + 8 * q) * 4))
    ldcs(0)
    for gi, (st, q) in enumerate(groups):
        c = CS[gi % 2]
        A = acc + 16 * st + 4 * q
        for i in range(4): a("v_mul_f32 v%d, v%d, v%d" % (X + i, vnmr, c + i))
        if gi + 1 < 8: ldcs(gi + 1)
        for i in range(4): a("v_fma_f32 v%d, v%d, v%d, v%d" % (X + i, A + i, vr, X + i))
        for i in range(4): a("v_mul_f32 v%d, v%d, v%d" % (P + i, X + i, X + i))
        for i in range(4): a("v_fma_f32 v%d, v%d, s%d, v%d" % (P + i, P + i, sC1, E + 4))
        for i in range(4): a("v_mul_f32 v%d, v%d, v%d" % (P + i, P + i, X + i))
        for i in range(4): a("v_exp_f32 v%d, v%d" % (E + i, P + i))
        for i in range(4): a("v_add_f32 v%d, 1.0, v%d" % (E + i, E + i))
        for i in range(4): a("v_rcp_f32 v%d, v%d" % (E + i, E + i))
        for i in range(4): a("v_mul_f32 v%d, v%d, v%d" % (X + i, X + i, E + i))
        o = outregs[2 * gi]
        a("v_cvt_pk_bf16_f32 v%d, v%d, v%d" % (o, X, X + 1))
        a("v_cvt_pk_bf16_f32 v%d, v%d, v%d" % (o + 1, X + 2, X + 3))
        if store and q % 2 == 1:
            store(a, st, q - 1, outregs[2 * gi - 2])
    return a

def build_k1(name, prefetch_code=None):
    a = Asm()
    a("s_cmp_ge_u32 s2, 256")
    a("s_cbranch_scc1 K1_end")
    a("s_load_dwordx2 s[4:5], s[0:1], 0")
    a("s_load_dwordx2 s[6:7], s[0:1], 32")
    a("s_load_dwordx2 s[8:9], s[0:1], 80")
    a("s_load_dwordx2 s[10:11], s[0:1], 72")
    a("s_load_dwordx4 s[12:15], s[0:1], 8")
    a("s_load_dwordx2 s[66:67], s[0:1], 40")
    a("v_lshrrev_b32 v1, 6, v0")
    a("v_and_b32 v0, 63, v0")
    a("v_readfirstlane_b32 s%d, v1" % sWAVE)
    a("s_cmp_lg_u32 s%d, 7" % sWAVE)
    a("s_cbranch_scc1 K1_nopf")
    code_prefetch(a, name, "K1_codeend", 76, 40, 44)
    a.label("K1_nopf")
    a("s_getpc_b64 s[28:29]")
    a("s_add_u32 s28, s28, tab0@rel32@lo+4")
    a("s_addc_u32 s29, s29, tab0@rel32@hi+12")
    a("s_and_b32 s29, s29, 0xffff")
    a("s_mov_b32 s30, %d" % TAB_SIZE)
    a("s_mov_b32 s31, 0x20000")
    a("s_and_b32 s48, s2, 7")
    a("s_lshr_b32 s49, s2, 3")
    divmod7(a, 50, 51, 49)
    a("s_and_b32 s52, s48, 1")
    a("s_mul_i32 s52, s52, 7")
    a("s_add_u32 s%d, s52, s51" % sCG)
    a("s_lshr_b32 s52, s48, 1")
    a("s_lshl_b32 s52, s52, 2")
    a("s_add_u32 s%d, s52, s50" % sRB)
    a("s_lshl_b32 s52, s50, 1")
    a("s_add_u32 s52, s52, s51")
    for j in range(7):
        a("s_add_u32 s53, s52, %d" % j)
        divmod7(a, 54, sKC + j, 53)
    a("s_waitcnt lgkmcnt(0)")
    srd(a, sX, 4, S * D * 2)
    srd(a, sWIN, 6, D * 1792 * 2)
    srd(a, sWS, 8, WS_SIZE)
    srd(a, sDBG, 10, 256)
    stamp(a, 0)
    stampc(a, 14)
    a("s_cmp_ge_u32 s2, 224")
    a("s_cbranch_scc1 K1_side")
    a("s_cmp_ge_u32 s%d, 4" % sWAVE)
    a("s_cbranch_scc1 K1_helper")

    XF = 16
    ACA, ACB = 128, 160
    WF = 192
    Z2P = 216
    T = 232
    vXO0, vXO1 = 1, 2
    vTR = [3, 4, 5, 6]
    vSUM, vSQ = 7, 8
    vONE = 9
    vM, vR, vNMR = 10, 11, 12
    vSTO = 13
    vCSA = 14
    vCST = 15
    a("s_lshl_b32 s55, s%d, 7" % sRB)
    a("s_lshl_b32 s56, s%d, 5" % sWAVE)
    a("s_add_u32 s55, s55, s56")
    a("v_and_b32 v%d, 15, v0" % T)
    a("v_add_u32 v%d, s55, v%d" % (T, T))
    a("v_mul_u32_u24 v%d, 896, v%d" % (T, T))
    a("v_lshrrev_b32 v%d, 4, v0" % (T + 1))
    a("v_lshl_add_u32 v%d, v%d, 4, v%d" % (vXO0, T + 1, T))
    a("v_add_u32 v%d, %d, v%d" % (vXO1, 16 * 896, vXO0))
    for j in range(7): a("s_lshl_b32 s%d, s%d, 7" % (57 + j, sKC + j))
    def xload(j):
        b = XF + 16 * j
        a("buffer_load_dwordx4 v[%d:%d], v%d, s[%d:%d], s%d offen" % (b, b + 3, vXO0, sX, sX + 3, 57 + j))
        a("buffer_load_dwordx4 v[%d:%d], v%d, s[%d:%d], s%d offen" % (b + 4, b + 7, vXO1, sX, sX + 3, 57 + j))
        a("buffer_load_dwordx4 v[%d:%d], v%d, s[%d:%d], s%d offen offset:64" % (b + 8, b + 11, vXO0, sX, sX + 3, 57 + j))
        a("buffer_load_dwordx4 v[%d:%d], v%d, s[%d:%d], s%d offen offset:64" % (b + 12, b + 15, vXO1, sX, sX + 3, 57 + j))
    for j in range(3): xload(j)
    a("v_and_b32 v%d, 31, v0" % T)
    a("v_lshlrev_b32 v%d, 2, v%d" % (T + 1, T))
    a("s_lshl_b32 s48, s%d, 7" % sCG)
    a("s_add_u32 s48, s48, %d" % TAB_CST)
    a("buffer_load_dword v%d, v%d, s[%d:%d], s48 offen" % (vCST, T + 1, sTAB, sTAB + 3))
    a("v_add_u32 v%d, s55, v%d" % (T + 1, T))
    a("v_mul_u32_u24 v%d, 1792, v%d" % (T + 1, T + 1))
    a("v_lshrrev_b32 v%d, 5, v0" % (T + 2))
    a("v_lshl_add_u32 v%d, v%d, 4, v%d" % (vSTO, T + 2, T + 1))
    a("s_lshl_b32 s48, s%d, 7" % sCG)
    a("v_add_u32 v%d, s48, v%d" % (vSTO, vSTO))
    a("v_lshlrev_b32 v%d, 4, v%d" % (vCSA, T + 2))
    a("v_bfe_u32 v%d, v0, 2, 2" % (T + 3))
    a("v_lshl_add_u32 v%d, v%d, 4, v%d" % (T + 4, T + 2, T + 3))
    a("v_lshlrev_b32 v%d, 7, v%d" % (T + 4, T + 4))
    a("v_lshrrev_b32 v%d, 1, v%d" % (T + 3, T + 3))
    a("v_lshl_add_u32 v%d, v%d, 6, v%d" % (T + 4, T + 3, T + 4))
    a("v_bfe_u32 v%d, v0, 4, 1" % (T + 3))
    a("v_lshl_add_u32 v%d, v%d, 5, v%d" % (T + 4, T + 3, T + 4))
    a("v_and_b32 v%d, 3, v0" % (T + 3))
    a("v_lshl_add_u32 v%d, v%d, 3, v%d" % (vTR[0], T + 3, T + 4))
    a("v_xor_b32 v%d, 64, v%d" % (vTR[1], vTR[0]))
    a("v_add_u32 v%d, %d, v%d" % (vTR[2], L_W1, vTR[0]))
    a("v_add_u32 v%d, %d, v%d" % (vTR[3], L_W1, vTR[1]))
    a("v_mov_b32 v%d, 0" % vSUM)
    a("v_mov_b32 v%d, 0" % vSQ)
    a("v_mov_b32 v%d, 0x3f803f80" % vONE)
    a("s_mov_b32 s%d, 0x%08x" % (sC1, f32bits(GC1)))

    def wreads(m, part, j, e):
        b = WF + 8 * (e % 3)
        off = (64 * j + 32 * (e // 2) + 8 * (e % 2)) * 128
        for st in range(2):
            m("ds_read_b64_tr_b16 v[%d:%d], v%d offset:%d" % (b + 4 * st, b + 4 * st + 1, vTR[2 * part + st], off))
            m("ds_read_b64_tr_b16 v[%d:%d], v%d offset:%d" % (b + 4 * st + 2, b + 4 * st + 3, vTR[2 * part + st], off + 512))
    def wmfma(m, acc, j, e):
        b = WF + 8 * (e % 3)
        x = XF + 16 * j + 4 * e
        for st in range(2):
            c = "0" if (j == 0 and e == 0) else "v[%d:%d]" % (acc + 16 * st, acc + 16 * st + 15)
            m("v_mfma_f32_32x32x16_bf16 v[%d:%d], v[%d:%d], v[%d:%d], %s" % (acc + 16 * st, acc + 16 * st + 15, b + 4 * st, b + 4 * st + 3, x, x + 3, c))
    for j in range(7):
        b = XF + 16 * j
        for i in range(4): a("v_permlane16_swap_b32 v%d, v%d" % (b + i, b + 4 + i))
        for i in range(4): a("v_permlane16_swap_b32 v%d, v%d" % (b + 8 + i, b + 12 + i))
        if j + 3 < 7: xload(j + 3)
        a("s_barrier")
        if j in (0, 3): stamp(a, 1 + j // 3)
        wreads(a, 0, j, 0); wreads(a, 0, j, 1); wreads(a, 0, j, 2)
        for i in range(16):
            a("v_dot2_f32_bf16 v%d, v%d, v%d, v%d" % (vSUM, b + i, vONE, vSUM))
            a("v_dot2_f32_bf16 v%d, v%d, v%d, v%d" % (vSQ, b + i, b + i, vSQ))
        wmfma(a, ACA, j, 0)
        wreads(a, 0, j, 3)
        wmfma(a, ACA, j, 1); wmfma(a, ACA, j, 2); wmfma(a, ACA, j, 3)
    stamp(a, 3)
    half_sum(a, vSUM, T); half_sum(a, vSQ, T + 1)
    ln_finish(a, vSUM, vSQ, 448, vM, vR, T, T + 1)
    a("v_mul_f32 v%d, v%d, v%d" % (vNMR, vM, vR))
    a("v_sub_f32 v%d, 0, v%d" % (vNMR, vNMR))
    a("v_and_b32 v%d, 31, v0" % T)
    a("v_lshlrev_b32 v%d, 2, v%d" % (T, T))
    a("s_lshl_b32 s48, s%d, 8" % sWAVE)
    a("s_add_u32 s48, s48, %d" % L_MR)
    a("v_add_u32 v%d, s48, v%d" % (T, T))
    a("v_sub_f32 v%d, 0, v%d" % (T + 1, vM))
    a("v_mul_f32 v%d, 0x%08x, v%d" % (T + 2, f32bits(A1), vR))
    a("ds_write_b32 v%d, v%d" % (T, T + 1))
    a("ds_write_b32 v%d, v%d offset:128" % (T, T + 2))
    a("v_mov_b32 v%d, 0x%08x" % (T + 20, f32bits(GC0)))
    a("v_add_u32 v%d, %d, v%d" % (vCSA, L_CS, vCSA))
    m = Asm()
    for j in range(7):
        m("s_barrier")
        wreads(m, 1, j, 0); wreads(m, 1, j, 1); wreads(m, 1, j, 2)
        wmfma(m, ACB, j, 0)
        wreads(m, 1, j, 3)
        wmfma(m, ACB, j, 1); wmfma(m, ACB, j, 2); wmfma(m, ACB, j, 3)
    g2 = gelu_stream(ACA, 0, vCSA, vNMR, vR, [Z2P + i for i in range(16)], T)
    a.extend(interleave(m, g2, 5.6))
    stamp(a, 4)
    a("v_mov_b32 v%d, 0" % vSUM)
    a("v_mov_b32 v%d, 0" % vSQ)
    for i in range(16):
        a("v_dot2_f32_bf16 v%d, v%d, v%d, v%d" % (vSUM, Z2P + i, vONE, vSUM))
        a("v_dot2_f32_bf16 v%d, v%d, v%d, v%d" % (vSQ, Z2P + i, Z2P + i, vSQ))
    half_sum(a, vSUM, T); half_sum(a, vSQ, T + 1)
    a("v_and_b32 v%d, -2, v%d" % (T + 2, vSUM))
    a("v_and_b32 v%d, -2, v%d" % (T + 3, vSQ))
    a("s_mul_i32 s48, s%d, 14" % sRB)
    a("s_add_u32 s48, s48, s%d" % sCG)
    a("s_lshl_b32 s48, s48, 10")
    a("s_lshl_b32 s49, s%d, 8" % sWAVE)
    a("s_add_u32 s48, s48, s49")
    a("s_add_u32 s48, s48, %d" % WS_ST)
    a("v_and_b32 v%d, 31, v0" % T)
    a("v_lshlrev_b32 v%d, 3, v%d" % (T, T))
    a("buffer_store_dwordx2 v[%d:%d], v%d, s[%d:%d], s48 offen sc0 sc1" % (T + 2, T + 3, T, sWS, sWS + 3))
    ACY = ACA
    a("v_lshlrev_b32 v%d, 4, v0" % vTR[0])
    a("v_add_u32 v%d, %d, v%d" % (vTR[0], L_T1, vTR[0]))
    a("s_mov_b32 s48, %d" % WS_Z1)
    a("s_barrier")
    stamp(a, 5)
    m = Asm()
    def tread(st):
        b = WF + 4 * (st % 6)
        m("ds_read_b128 v[%d:%d], v%d offset:%d" % (b, b + 3, vTR[0], st * 1024))
    for st in range(4): tread(st)
    for st in range(28):
        b = WF + 4 * (st % 6)
        x = XF + 4 * st
        c = "0" if st == 0 else "v[%d:%d]" % (ACY, ACY + 15)
        m("v_mfma_f32_32x32x16_bf16 v[%d:%d], v[%d:%d], v[%d:%d], %s" % (ACY, ACY + 15, x, x + 3, b, b + 3, c))
        if st + 4 < 28: tread(st + 4)
    Z1P = ACA + 16
    def zstore(mm, st, q0, b4):
        mm("v_permlane32_swap_b32 v%d, v%d" % (b4, b4 + 2))
        mm("v_permlane32_swap_b32 v%d, v%d" % (b4 + 1, b4 + 3))
        mm("buffer_store_dwordx4 v[%d:%d], v%d, s[%d:%d], s48 offen offset:%d" % (b4, b4 + 3, vSTO, sWS, sWS + 3, st * 64 + q0 * 16))
    g1 = gelu_stream(ACB, 256, vCSA, vNMR, vR, [Z1P + i for i in range(16)], T, zstore)
    a.extend(interleave(m, g1, 6))
    stamp(a, 6)
    a("v_lshrrev_b32 v%d, 5, v0" % T)
    a("v_lshlrev_b32 v%d, 4, v%d" % (T + 1, T))
    a("s_lshl_b32 s49, s%d, 8" % sWAVE)
    a("s_add_u32 s49, s49, %d" % L_MR)
    a("v_add_u32 v%d, s49, v%d" % (T + 1, T + 1))
    NM = WF; RA = ACB
    for q in range(4):
        a("ds_read_b128 v[%d:%d], v%d offset:%d" % (NM + 4 * q, NM + 4 * q + 3, T + 1, 32 * q))
        a("ds_read_b128 v[%d:%d], v%d offset:%d" % (RA + 4 * q, RA + 4 * q + 3, T + 1, 128 + 32 * q))
    a("v_and_b32 v%d, 31, v0" % (T + 2))
    a("s_lshl_b32 s49, s%d, 5" % sCG)
    a("v_add_u32 v%d, s49, v%d" % (T + 2, T + 2))
    a("v_mul_u32_u24 v%d, %d, v%d" % (T + 2, YSTR, T + 2))
    a("v_lshl_add_u32 v%d, v%d, 4, v%d" % (T + 2, T, T + 2))
    a("s_lshl_b32 s49, s55, 1")
    a("s_add_u32 s49, s49, %d" % WS_YT)
    for r in range(16): a("v_fma_f32 v%d, v%d, v%d, v%d" % (ACY + r, NM + r, vCST, ACY + r))
    for r in range(16): a("v_mul_f32 v%d, v%d, v%d" % (ACY + r, ACY + r, RA + r))
    YP = T + 4
    for r in range(8): a("v_cvt_pk_f16_f32 v%d, v%d, v%d" % (YP + r, ACY + 2 * r, ACY + 2 * r + 1))
    for q0 in (0, 2):
        b4 = YP + 2 * q0
        a("v_permlane32_swap_b32 v%d, v%d" % (b4, b4 + 2))
        a("v_permlane32_swap_b32 v%d, v%d" % (b4 + 1, b4 + 3))
        a("buffer_store_dwordx4 v[%d:%d], v%d, s[%d:%d], s49 offen offset:%d" % (b4, b4 + 3, T + 2, sWS, sWS + 3, q0 * 16))
    a("v_and_b32 v%d, 31, v0" % T)
    a("v_lshlrev_b32 v%d, 3, v%d" % (T, T))
    a("s_lshl_b32 s49, s%d, 8" % sWAVE)
    a("s_add_u32 s49, s49, %d" % L_LN)
    a("v_add_u32 v%d, s49, v%d" % (T, T))
    a("s_mov_b32 s48, %d" % WS_Z2)
    stamp(a, 7)
    a("s_barrier")
    stamp(a, 8)
    a("ds_read_b64 v[%d:%d], v%d" % (T + 2, T + 3, T))
    U = ACB
    for i in range(16):
        a("v_lshlrev_b32 v%d, 16, v%d" % (U + 2 * i, Z2P + i))
        a("v_and_b32 v%d, 0xffff0000, v%d" % (U + 2 * i + 1, Z2P + i))
    for st in range(2):
        for q0 in (0, 2):
            i0 = 8 * st + 2 * q0
            for i in range(2 * i0, 2 * i0 + 8):
                a("v_fma_f32 v%d, v%d, v%d, v%d" % (U + i, U + i, T + 3, T + 2))
            for i in range(i0, i0 + 4):
                a("v_cvt_pk_bf16_f32 v%d, v%d, v%d" % (Z2P + i, U + 2 * i, U + 2 * i + 1))
            zstore(a, st, q0, Z2P + i0)
    stamp(a, 9)
    stampc(a, 15)
    if STAMPS:
        a("s_waitcnt vmcnt(0)")
        stamp(a, 10)
    stamp_flush(a, 0, sWAVE, sWS)
    a("s_endpgm")

    a.label("K1_helper")
    a.auto(False)
    a("s_sub_u32 s%d, s%d, 4" % (sWAVE, sWAVE))
    a("v_lshrrev_b32 v3, 3, v0")
    a("s_lshl_b32 s49, s%d, 4" % sWAVE)
    a("v_add_u32 v3, s49, v3")
    a("v_mul_u32_u24 v3, 3584, v3")
    a("v_and_b32 v4, 7, v0")
    a("v_bfe_u32 v5, v0, 4, 1")
    a("v_lshlrev_b32 v5, 2, v5")
    a("v_xor_b32 v4, v4, v5")
    a("v_lshl_add_u32 v3, v4, 4, v3")
    a("v_add_u32 v4, %d, v3" % (8 * 3584))
    a("v_lshlrev_b32 v5, 4, v0")
    a("s_lshl_b32 s50, s%d, 11" % sWAVE)
    a("s_lshl_b32 s51, s%d, 10" % sWAVE)
    a("s_lshl_b32 s52, s%d, 7" % sCG)
    a("s_mul_i32 s53, s%d, 28672" % sCG)
    a("s_add_u32 s53, s53, s51")
    def issue(c):
        if c < 14:
            part, j = c // 7, c % 7
            a("s_mul_i32 s54, s%d, %d" % (sKC + j, 64 * 3584))
            a("s_add_u32 s54, s54, s52")
            if part == 0: a("s_add_u32 s54, s54, 1792")
            reg = (L_W2 if part == 0 else L_W1) + j * 8192
            a("s_add_u32 m0, s50, %d" % reg)
            a("buffer_load_dwordx4 v3, s[%d:%d], s54 offen lds" % (sWIN, sWIN + 3))
            a("s_add_u32 m0, s50, %d" % (reg + 1024))
            a("buffer_load_dwordx4 v4, s[%d:%d], s54 offen lds" % (sWIN, sWIN + 3))
            return 2
        else:
            j = c - 14
            a("s_lshl_b32 s54, s%d, 12" % (sKC + j))
            a("s_add_u32 s54, s54, s53")
            a("s_add_u32 m0, s51, %d" % (L_T1 + j * 4096))
            a("buffer_load_dwordx4 v5, s[%d:%d], s54 offen lds" % (sTAB, sTAB + 3))
            return 1
    LOOK = 4
    issued = []
    for c in range(LOOK): issued.append(issue(c))
    a("s_mul_i32 s48, s%d, 14" % sRB)
    a("s_add_u32 s48, s48, s%d" % sCG)
    a("s_lshl_b32 s48, s48, 10")
    a("s_lshl_b32 s49, s%d, 8" % sWAVE)
    a("s_add_u32 s48, s48, s49")
    a("s_add_u32 s48, s48, %d" % WS_ST)
    a("v_lshlrev_b32 v1, 2, v0")
    a("v_mov_b32 v2, -1")
    a("buffer_store_dword v2, v1, s[%d:%d], s48 offen sc0 sc1" % (sWS, sWS + 3))
    issued[-1] += 1
    a("v_lshrrev_b32 v8, 5, v0")
    a("v_bfe_u32 v9, v0, 2, 2")
    a("v_lshl_add_u32 v10, v8, 4, v9")
    a("v_lshlrev_b32 v10, 7, v10")
    a("v_lshrrev_b32 v9, 1, v9")
    a("v_lshl_add_u32 v10, v9, 6, v10")
    a("v_bfe_u32 v9, v0, 4, 1")
    a("v_lshl_add_u32 v10, v9, 5, v10")
    a("v_and_b32 v9, 3, v0")
    a("v_lshl_add_u32 v10, v9, 3, v10")
    a("s_and_b32 s55, s%d, 1" % sWAVE)
    a("s_lshl_b32 s55, s55, 6")
    a("v_xor_b32 v10, s55, v10")
    a("s_lshr_b32 s56, s%d, 1" % sWAVE)
    a("s_mul_i32 s55, s56, %d" % L_W1)
    a("v_add_u32 v10, s55, v10")
    a("v_mov_b32 v11, 0")
    a("v_mov_b32 v12, 0x3f803f80")
    nxt = LOOK
    for c in range(14):
        after = sum(issued[c + 1:])
        a("s_waitcnt vmcnt(%d)" % after)
        a("s_barrier")
        n_issue = 1 if c < 10 else 2
        for _ in range(n_issue):
            if nxt < 21: issued.append(issue(nxt)); nxt += 1
        if c == LOOK - 1:
            lab = a.newlabel("K1_nf")
            a("s_cmp_lg_u32 s%d, 0" % sWAVE)
            a("s_cbranch_scc1 %s" % lab)
            a("s_lshl_b32 s54, s%d, 4" % sRB)
            a("s_add_u32 s54, s54, s%d" % sCG)
            a("v_mov_b32 v6, 0")
            a("v_mov_b32 v7, 1")
            a("buffer_store_byte v7, v6, s[%d:%d], s54 offen sc0 sc1" % (sDBG, sDBG + 3))
            a.label(lab)
        part, j = c // 7, c % 7
        lab = a.newlabel("K1_ncs")
        a("s_cmp_lg_u32 s56, %d" % part)
        a("s_cbranch_scc1 %s" % lab)
        for e in range(4):
            off = (64 * j + 32 * (e // 2) + 8 * (e % 2)) * 128
            a("ds_read_b64_tr_b16 v[%d:%d], v10 offset:%d" % (16 + 4 * e, 17 + 4 * e, off))
            a("ds_read_b64_tr_b16 v[%d:%d], v10 offset:%d" % (18 + 4 * e, 19 + 4 * e, off + 512))
        a("s_waitcnt lgkmcnt(0)")
        for i in range(16): a("v_dot2_f32_bf16 v11, v%d, v12, v11" % (16 + i))
        if j == 6:
            half_sum(a, 11, 13)
            a("v_and_b32 v13, 31, v0")
            a("v_lshlrev_b32 v13, 2, v13")
            a("s_lshl_b32 s54, s%d, 7" % sWAVE)
            a("s_add_u32 s54, s54, %d" % L_CS)
            a("v_add_u32 v13, s54, v13")
            a("ds_write_b32 v13, v11")
            a("s_waitcnt lgkmcnt(0)")
        a.label(lab)
    while nxt < 21: issued.append(issue(nxt)); nxt += 1
    a("s_waitcnt vmcnt(0)")
    a("s_barrier")
    a("s_lshl_b32 s54, s%d, 4" % sRB)
    a("v_mov_b32 v6, 0")
    a.label("K1_pollf")
    a("buffer_load_dwordx4 v[16:19], v6, s[%d:%d], s54 offen sc0 sc1" % (sDBG, sDBG + 3))
    a("s_waitcnt vmcnt(0)")
    a("v_and_b32 v16, v16, v17")
    a("v_and_b32 v16, v16, v18")
    a("v_or_b32 v19, 0x01010000, v19")
    a("v_and_b32 v16, v16, v19")
    a("v_cmp_ne_u32 vcc, 0x01010101, v16")
    a("s_cbranch_vccnz K1_pollf")
    a("v_lshrrev_b32 v6, 5, v0")
    a("v_mul_u32_u24 v6, 7168, v6")
    a("v_and_b32 v7, 31, v0")
    a("v_lshl_add_u32 v6, v7, 3, v6")
    a("s_mul_i32 s54, s%d, 14336" % sRB)
    a("s_lshl_b32 s55, s%d, 8" % sWAVE)
    a("s_add_u32 s54, s54, s55")
    a("s_add_u32 s54, s54, %d" % WS_ST)
    a("s_add_u32 s55, s54, 4096")
    a.label("K1_polls")
    for p in range(7):
        a("buffer_load_dwordx2 v[%d:%d], v6, s[%d:%d], s%d offen offset:%d sc0 sc1" % (16 + 2 * p, 17 + 2 * p, sWS, sWS + 3, 54 + p // 4, (p % 4) * 1024))
    a("s_waitcnt vmcnt(0)")
    a("v_or3_b32 v8, v16, v17, v18")
    for p in range(19, 29, 2): a("v_or3_b32 v8, v8, v%d, v%d" % (p, p + 1))
    a("v_or_b32 v8, v8, v29")
    a("v_and_b32 v8, 1, v8")
    a("v_cmp_ne_u32 vcc, 0, v8")
    a("s_cbranch_vccnz K1_polls")
    for p in range(1, 7):
        a("v_add_f32 v16, v16, v%d" % (16 + 2 * p))
        a("v_add_f32 v17, v17, v%d" % (17 + 2 * p))
    half_sum(a, 16, 8); half_sum(a, 17, 9)
    ln_finish(a, 16, 17, 896, 20, 21, 8, 9)
    a("v_mul_f32 v20, v20, v21")
    a("v_sub_f32 v20, 0, v20")
    a("v_lshlrev_b32 v7, 3, v7")
    a("s_lshl_b32 s55, s%d, 8" % sWAVE)
    a("s_add_u32 s55, s55, %d" % L_LN)
    a("v_add_u32 v7, s55, v7")
    a("ds_write_b64 v7, v[20:21]")
    a("s_waitcnt lgkmcnt(0)")
    a("s_barrier")
    a("s_endpgm")

    a.label("K1_side")
    a.auto(True)
    srd(a, 68, 12, S * 225 * 2)
    srd(a, 72, 14, S * 225 * 2)
    a("s_sub_u32 s48, s2, 224")
    a("s_lshl_b32 s48, s48, 3")
    a("s_add_u32 s48, s48, s%d" % sWAVE)
    a("s_lshr_b32 s49, s48, 4")
    a("s_bfe_u32 s50, s48, 0x20002")
    a("s_and_b32 s51, s48, 3")
    a("s_lshl_b32 s52, s51, 6")
    a("v_add_u32 v1, s52, v0")
    a("v_lshlrev_b32 v2, 1, v1")
    a("s_lshl_b32 s52, s49, 7")
    a("s_lshl_b32 s53, s50, 3")
    a("s_add_u32 s52, s52, s53")
    a("s_mul_i32 s52, s52, 450")
    for jj in range(4): a("s_add_u32 s%d, s52, %d" % (56 + jj, jj * 14400))
    a("v_lshlrev_b32 v3, 13, v1")
    a("s_lshl_b32 s52, s49, 5")
    a("s_add_u32 s52, s52, s53")
    a("s_lshl_b32 s52, s52, 4")
    a("s_add_u32 s52, s52, %d" % WS_WT)
    a("v_mov_b32 v4, 0x7f000000")
    a("v_cmp_gt_u32 vcc, 225, v1")
    a("v_cndmask_b32 v3, v4, v3, vcc")
    RR, RI = 16, 48
    for i in range(8):
        for jj in range(4):
            a("buffer_load_ushort v%d, v2, s[68:71], s%d offen offset:%d" % (RR + 4 * i + jj, 56 + jj, i * 450))
            a("buffer_load_ushort v%d, v2, s[72:75], s%d offen offset:%d" % (RI + 4 * i + jj, 56 + jj, i * 450))
    a("v_mov_b32 v5, 0")
    a("s_mov_b32 s60, 0x7fff7fff")
    for i in range(8):
        for jj in range(4):
            r = RR + 4 * i + jj
            a("v_lshl_or_b32 v%d, v%d, 16, v%d" % (r, RI + 4 * i + jj, r))
            a("v_and_b32 v6, s60, v%d" % r)
            a("v_pk_max_u16 v5, v5, v6")
        a("buffer_store_dwordx4 v[%d:%d], v3, s[%d:%d], s52 offen offset:%d" % (RR + 4 * i, RR + 4 * i + 3, sWS, sWS + 3, i * 16))
    a("v_lshrrev_b32 v6, 16, v5")
    a("v_and_b32 v5, 0xffff, v5")
    a("v_max_u32 v5, v5, v6")
    for x in (1, 2, 4, 8, 16):
        a("ds_swizzle_b32 v6, v5 offset:0x%x" % ((x << 10) | 0x1f))
        a("v_max_u32 v5, v5, v6")
    a("v_mov_b32 v6, v5")
    a("v_permlane32_swap_b32 v5, v6")
    a("v_max_u32 v5, v5, v6")
    a("s_lshl_b32 s48, s48, 2")
    a("s_add_u32 s48, s48, %d" % WS_WMAX)
    a("v_mov_b32 v6, 0")
    a("buffer_store_dword v5, v6, s[%d:%d], s48 offen" % (sWS, sWS + 3))
    if STAMPS:
        a("s_waitcnt vmcnt(0)")
        stamp(a, 10)
    stamp_flush(a, 0, sWAVE, sWS)
    a.label("K1_end")
    a("s_endpgm")
    a.label("K1_codeend")
    return kernel_begin(name) + a.text()
```

```python
from common import *

DEPTH = 4
STG = 24576
L_FC = 0
L_COL = 63488
K2_LDS = L_COL + 8 * 8192

sWSP, sWS, sTAB, sB = 16, 20, 24, 28
sWAVE, sFT, sTT, sROT = 36, 37, 38, 39

def tr_base(a, dst, t0, t1):
    a("v_lshrrev_b32 v%d, 5, v0" % t0)
    a("v_bfe_u32 v%d, v0, 2, 2" % t1)
    a("v_lshl_add_u32 v%d, v%d, 3, v%d" % (dst, t0, t1))
    a("v_lshlrev_b32 v%d, 7, v%d" % (dst, dst))
    a("v_lshrrev_b32 v%d, 1, v%d" % (t1, t1))
    a("v_lshl_add_u32 v%d, v%d, 6, v%d" % (dst, t1, dst))
    a("v_bfe_u32 v%d, v0, 4, 1" % t1)
    a("v_lshl_add_u32 v%d, v%d, 5, v%d" % (dst, t1, dst))
    a("v_and_b32 v%d, 3, v0" % t1)
    a("v_lshl_add_u32 v%d, v%d, 3, v%d" % (dst, t1, dst))

def kc_bases(a, dst4, t0, t1):
    a("v_and_b32 v%d, 31, v0" % t0)
    a("v_bfe_u32 v%d, v0, 1, 3" % t1)
    a("v_lshrrev_b32 v%d, 5, v0" % dst4)
    a("v_xor_b32 v%d, v%d, v%d" % (t1, t1, dst4))
    for e in range(4):
        a("v_xor_b32 v%d, %d, v%d" % (dst4 + e, 2 * e, t1))
        a("v_lshlrev_b32 v%d, 4, v%d" % (dst4 + e, dst4 + e))
        a("v_lshl_add_u32 v%d, v%d, 7, v%d" % (dst4 + e, t0, dst4 + e))

def dma_tr_voff(a, dst, rowstride, t0, t1):
    a("v_lshrrev_b32 v%d, 3, v0" % dst)
    a("v_mul_u32_u24 v%d, %d, v%d" % (dst, rowstride, dst))
    a("v_and_b32 v%d, 7, v0" % t0)
    a("v_bfe_u32 v%d, v0, 4, 1" % t1)
    a("v_lshlrev_b32 v%d, 2, v%d" % (t1, t1))
    a("v_xor_b32 v%d, v%d, v%d" % (t0, t0, t1))
    a("v_lshl_add_u32 v%d, v%d, 4, v%d" % (dst, t0, dst))

def dma_kc_voff(a, dst, rowstride, odd, t0, t1):
    a("v_lshrrev_b32 v%d, 3, v0" % dst)
    a("v_mul_u32_u24 v%d, %d, v%d" % (dst, rowstride, dst))
    a("v_and_b32 v%d, 7, v0" % t0)
    a("v_lshrrev_b32 v%d, 4, v0" % t1)
    if odd: a("v_add_u32 v%d, 4, v%d" % (t1, t1))
    a("v_xor_b32 v%d, v%d, v%d" % (t0, t0, t1))
    a("v_lshl_add_u32 v%d, v%d, 4, v%d" % (dst, t0, dst))

def build_k2(name):
    a = Asm()
    a("s_cmp_ge_u32 s2, 253")
    a("s_cbranch_scc1 K2_end")
    a("s_load_dwordx4 s[4:7], s[0:1], 40")
    a("s_load_dwordx2 s[8:9], s[0:1], 80")
    a("v_lshrrev_b32 v1, 6, v0")
    a("v_and_b32 v0, 63, v0")
    a("v_readfirstlane_b32 s%d, v1" % sWAVE)
    a("s_getpc_b64 s[24:25]")
    a("s_add_u32 s24, s24, tab0@rel32@lo+4")
    a("s_addc_u32 s25, s25, tab0@rel32@hi+12")
    a("s_and_b32 s25, s25, 0xffff")
    a("s_mov_b32 s26, %d" % TAB_SIZE)
    a("s_mov_b32 s27, 0x20000")
    a("s_and_b32 s48, s2, 7")
    a("s_lshr_b32 s49, s2, 3")
    divmod7(a, 50, 51, 49)
    a("s_and_b32 s52, s48, 1")
    a("s_mul_i32 s52, s52, 7")
    a("s_add_u32 s%d, s52, s51" % sFT)
    a("s_lshr_b32 s52, s48, 1")
    a("s_lshl_b32 s52, s52, 2")
    a("s_add_u32 s%d, s52, s50" % sTT)
    a("s_mul_i32 s52, s51, 5")
    a("s_lshl_b32 s53, s50, 3")
    a("s_add_u32 s%d, s52, s53" % sROT)
    a("s_waitcnt lgkmcnt(0)")
    srd(a, sWSP, 4, S * S * 2)
    srd(a, sB, 6, S * 2)
    srd(a, sWS, 8, WS_SIZE)
    stamp(a, 0)
    a("s_cmp_ge_u32 s2, 224")
    a("s_cbranch_scc1 K2_fft")
    a("s_cmp_ge_u32 s%d, 4" % sWAVE)
    a("s_cbranch_scc1 K2_loader")
    a.auto(False)
    ACC = 16
    FB = [48, 96]
    vTA = 1; vKB = 2
    Z1R = 144
    vZO = 6; vBV = 8
    tr_base(a, vTA, 10, 11)
    a("s_and_b32 s48, s%d, 1" % sWAVE)
    a("s_lshl_b32 s49, s48, 6")
    a("v_xor_b32 v%d, s49, v%d" % (vTA, vTA))
    kc_bases(a, vKB, 10, 11)
    a("s_lshr_b32 s49, s%d, 1" % sWAVE)
    a("s_lshl_b32 s50, s49, 13")
    a("s_add_u32 s50, s50, 8192")
    for e in range(4): a("v_add_u32 v%d, s50, v%d" % (vKB + e, vKB + e))
    a("s_lshl_b32 s50, s%d, 7" % sTT)
    a("s_lshl_b32 s51, s49, 6")
    a("s_add_u32 s50, s50, s51")
    a("v_and_b32 v10, 31, v0")
    a("v_add_u32 v10, s50, v10")
    a("v_lshlrev_b32 v12, 1, v10")
    a("v_mul_u32_u24 v10, 1792, v10")
    a("v_lshrrev_b32 v11, 5, v0")
    a("v_lshl_add_u32 v%d, v11, 4, v10" % vZO)
    a("s_lshl_b32 s50, s%d, 7" % sFT)
    a("s_lshl_b32 s51, s48, 6")
    a("s_add_u32 s50, s50, s51")
    a("v_add_u32 v%d, s50, v%d" % (vZO, vZO))
    a("v_add_u32 v%d, %d, v%d" % (vZO + 1, 32 * 1792, vZO))
    a("s_mov_b32 s50, %d" % WS_Z1)
    for ts in range(2):
        for qp in range(2):
            r = Z1R + 8 * ts + 4 * qp
            a("buffer_load_dwordx4 v[%d:%d], v%d, s[%d:%d], s50 offen offset:%d" % (r, r + 3, vZO + ts, sWS, sWS + 3, qp * 32))
    a("buffer_load_ushort v%d, v12, s[%d:%d], 0 offen" % (vBV, sB, sB + 3))
    a("buffer_load_ushort v%d, v12, s[%d:%d], 0 offen offset:64" % (vBV + 1, sB, sB + 3))
    for r in range(32): a("v_mov_b32 v%d, 0" % (ACC + r))
    def reads(slot, buf):
        base = slot * STG
        for e in range(4):
            b = FB[buf] + 12 * e
            a("ds_read_b64_tr_b16 v[%d:%d], v%d offset:%d" % (b, b + 1, vTA, base + 16 * e * 128))
            a("ds_read_b64_tr_b16 v[%d:%d], v%d offset:%d" % (b + 2, b + 3, vTA, base + 16 * e * 128 + 512))
            a("ds_read_b128 v[%d:%d], v%d offset:%d" % (b + 4, b + 7, vKB + e, base))
            a("ds_read_b128 v[%d:%d], v%d offset:%d" % (b + 8, b + 11, vKB + e, base + 4096))
    def mfmas(buf):
        for e in range(4):
            b = FB[buf] + 12 * e
            for ts in range(2):
                c = ACC + 16 * ts
                a("v_mfma_f32_32x32x16_bf16 v[%d:%d], v[%d:%d], v[%d:%d], v[%d:%d]" % (c, c + 15, b, b + 3, b + 4 + 4 * ts, b + 7 + 4 * ts, c, c + 15))
    vTA2 = 13; vKB2 = 160
    a("v_add_u32 v%d, 49152, v%d" % (vTA2, vTA))
    for e in range(4): a("v_add_u32 v%d, 49152, v%d" % (vKB2 + e, vKB + e))
    def reads2(slot, buf):
        nonlocal vTA, vKB
        if slot >= 2:
            o1, o2 = vTA, vKB
            vTA, vKB = vTA2, vKB2
            reads(slot - 2, buf)
            vTA, vKB = o1, o2
        else: reads(slot, buf)
    a("s_barrier")
    stamp(a, 1)
    reads2(0, 0)
    a("s_waitcnt lgkmcnt(0)")
    a("s_mov_b32 s52, 0")
    a.label("K2_cloop")
    for u in range(4):
        slot = (1 + u) % 4
        if u == 3:
            a("s_cmp_eq_u32 s52, 7")
            a("s_cbranch_scc1 K2_cdone")
        a("s_barrier")
        reads2(slot, (1 + u) % 2)
        mfmas(u % 2)
        a("s_waitcnt lgkmcnt(0)")
    a("s_add_u32 s52, s52, 1")
    a("s_branch K2_cloop")
    a.label("K2_cdone")
    mfmas(1)
    stamp(a, 2)
    a.auto(True)
    a("s_waitcnt vmcnt(0)")
    a("v_lshlrev_b32 v%d, 16, v%d" % (vBV, vBV))
    a("v_lshlrev_b32 v%d, 16, v%d" % (vBV + 1, vBV + 1))
    a("s_mov_b32 s50, %d" % WS_U)
    G = 48
    for ts in range(2):
        for qp in range(2):
            c = ACC + 16 * ts + 8 * qp
            g = G + 16 * (2 * ts + qp)
            for i in range(4): a("v_cvt_pk_bf16_f32 v%d, v%d, v%d" % (g + i, c + 2 * i, c + 2 * i + 1))
            a("v_permlane32_swap_b32 v%d, v%d" % (g, g + 2))
            a("v_permlane32_swap_b32 v%d, v%d" % (g + 1, g + 3))
            for i in range(4):
                a("v_lshlrev_b32 v%d, 16, v%d" % (g + 4 + 2 * i, g + i))
                a("v_and_b32 v%d, 0xffff0000, v%d" % (g + 5 + 2 * i, g + i))
            for i in range(8): a("v_add_f32 v%d, v%d, v%d" % (g + 4 + i, g + 4 + i, vBV + ts))
            for i in range(4): a("v_cvt_pk_bf16_f32 v%d, v%d, v%d" % (g + i, g + 4 + 2 * i, g + 5 + 2 * i))
            z = Z1R + 8 * ts + 4 * qp
            for i in range(4):
                a("v_lshlrev_b32 v%d, 16, v%d" % (g + 4 + 2 * i, g + i))
                a("v_and_b32 v%d, 0xffff0000, v%d" % (g + 5 + 2 * i, g + i))
                a("v_lshlrev_b32 v%d, 16, v%d" % (g + 12, z + i))
                a("v_and_b32 v%d, 0xffff0000, v%d" % (g + 13, z + i))
                a("v_mul_f32 v%d, v%d, v%d" % (g + 4 + 2 * i, g + 4 + 2 * i, g + 12))
                a("v_mul_f32 v%d, v%d, v%d" % (g + 5 + 2 * i, g + 5 + 2 * i, g + 13))
            for i in range(4): a("v_cvt_pk_bf16_f32 v%d, v%d, v%d" % (g + i, g + 4 + 2 * i, g + 5 + 2 * i))
            a("buffer_store_dwordx4 v[%d:%d], v%d, s[%d:%d], s50 offen offset:%d" % (g, g + 3, vZO + ts, sWS, sWS + 3, qp * 32))
    stamp(a, 3)
    if STAMPS:
        a("s_waitcnt vmcnt(0)")
        stamp(a, 4)
    stamp_flush(a, 1, sWAVE, sWS)
    a("s_endpgm")
    a.label("K2_loader")
    a.auto(False)
    a("s_sub_u32 s%d, s%d, 4" % (sWAVE, sWAVE))
    dma_tr_voff(a, 1, 1792, 10, 11)
    a("s_mul_i32 s48, s%d, %d" % (sWAVE, 16 * 1792))
    a("s_lshl_b32 s49, s%d, 7" % sFT)
    a("s_add_u32 s48, s48, s49")
    a("s_add_u32 s48, s48, %d" % WS_Z2)
    a("v_add_u32 v1, s48, v1")
    a("v_add_u32 v2, %d, v1" % (8 * 1792))
    dma_kc_voff(a, 3, 4096, 0, 10, 11)
    dma_kc_voff(a, 4, 4096, 1, 10, 11)
    a("s_lshl_b32 s48, s%d, 7" % sTT)
    a("s_lshl_b32 s49, s%d, 5" % sWAVE)
    a("s_add_u32 s48, s48, s49")
    a("s_lshl_b32 s48, s48, 12")
    a("v_add_u32 v3, s48, v3")
    a("s_add_u32 s48, s48, %d" % (8 * 4096))
    a("v_add_u32 v4, s48, v4")
    a("v_add_u32 v5, %d, v3" % (16 * 4096))
    a("v_add_u32 v6, %d, v4" % (16 * 4096))
    a("s_lshl_b32 s50, s%d, 11" % sWAVE)
    a("s_lshl_b32 s51, s%d, 12" % sWAVE)
    a("s_add_u32 s51, s51, 8192")
    a("s_mov_b32 s52, s%d" % sROT)
    def issue(slot):
        a("s_and_b32 s53, s52, 31")
        a("s_mul_i32 s54, s53, %d" % (64 * 1792))
        a("s_lshl_b32 s55, s53, 7")
        a("s_add_u32 s52, s52, 1")
        for i in range(2):
            a("s_add_u32 m0, s50, %d" % (slot * STG + i * 1024))
            a("buffer_load_dwordx4 v%d, s[%d:%d], s54 offen lds" % (1 + i, sWS, sWS + 3))
        for i in range(4):
            a("s_add_u32 m0, s51, %d" % (slot * STG + i * 1024))
            a("buffer_load_dwordx4 v%d, s[%d:%d], s55 offen lds" % (3 + i, sWSP, sWSP + 3))
    for k in range(3): issue(k)
    a("s_waitcnt vmcnt(12)")
    a("s_barrier")
    issue(3)
    a("s_mov_b32 s56, 0")
    a.label("K2_lloop")
    for u in range(4):
        a("s_waitcnt vmcnt(12)")
        a("s_barrier")
        issue(u % 4)
    a("s_add_u32 s56, s56, 1")
    a("s_cmp_lt_u32 s56, 7")
    a("s_cbranch_scc1 K2_lloop")
    for n in (12, 6, 0):
        a("s_waitcnt vmcnt(%d)" % n)
        a("s_barrier")
    a("s_endpgm")

    a.label("K2_fft")
    a.auto(True)
    build_fft(a)
    a.label("K2_end")
    a("s_endpgm")
    a.label("K2_codeend")
    return kernel_begin(name) + a.text()

def build_fft(a):
    sCOL, sRE, sIM = 40, 41, 42
    a("s_sub_u32 s%d, s2, 224" % sCOL)
    a("s_lshl_b32 s%d, s%d, 3" % (sCOL, sCOL))
    a("s_add_u32 s%d, s%d, s%d" % (sCOL, sCOL, sWAVE))
    a("v_lshlrev_b32 v1, 4, v0")
    a("s_lshl_b32 s48, s%d, 10" % sWAVE)
    a("s_add_u32 s49, s48, %d" % TAB_FFT)
    a("s_lshl_b32 s%d, s%d, 1" % (sRE, sCOL))
    a("s_add_u32 s%d, s%d, 1" % (sIM, sRE))
    a("s_cmp_eq_u32 s%d, 224" % sCOL)
    a("s_cselect_b32 s%d, 1, s%d" % (sRE, sRE))
    a("s_cselect_b32 s%d, 4000, s%d" % (sIM, sIM))
    a("s_cmp_eq_u32 s%d, 0" % sCOL)
    a("s_cselect_b32 s%d, 4000, s%d" % (sIM, sIM))
    a("s_cmp_gt_u32 s%d, 224" % sCOL)
    a("s_cselect_b32 s%d, 4000, s%d" % (sIM, sIM))
    a("s_cselect_b32 s%d, 4000, s%d" % (sRE, sRE))
    a("s_mul_i32 s%d, s%d, %d" % (sRE, sRE, YSTR))
    a("s_mul_i32 s%d, s%d, %d" % (sIM, sIM, YSTR))
    a("s_lshl_b32 s50, s%d, 13" % sWAVE)
    a("s_add_u32 s50, s50, %d" % L_COL)
    a("s_add_u32 s51, s%d, %d" % (sRE, WS_YT))
    a("s_add_u32 s52, s%d, %d" % (sIM, WS_YT))
    a("s_mov_b32 m0, s50")
    for i in range(4): a("buffer_load_dwordx4 v1, s[%d:%d], s51 offen offset:%d lds" % (sWS, sWS + 3, i * 1024))
    a("s_add_u32 m0, s50, 4096")
    for i in range(4): a("buffer_load_dwordx4 v1, s[%d:%d], s52 offen offset:%d lds" % (sWS, sWS + 3, i * 1024))
    for i in range(8):
        if i == 7:
            a("s_cmp_ge_u32 s%d, 6" % sWAVE)
            a("s_cbranch_scc1 K2_fskip")
        a("s_add_u32 m0, s48, %d" % (L_FC + i * 8192))
        a("buffer_load_dwordx4 v1, s[%d:%d], s49 offen lds" % (sTAB, sTAB + 3))
        a("s_add_u32 s49, s49, 8192")
    a.label("K2_fskip")
    WR = 200
    a("s_min_u32 s53, s%d, 224" % sCOL)
    a("s_lshl_b32 s53, s53, 13")
    a("s_add_u32 s53, s53, %d" % WS_WT)
    a("s_add_u32 s54, s53, 4096")
    a("s_mov_b32 s55, %d" % WS_WMAX)
    a("buffer_load_dwordx4 v[4:7], v1, s[%d:%d], s55 offen" % (sWS, sWS + 3))
    for i in range(8):
        a("buffer_load_dwordx4 v[%d:%d], v1, s[%d:%d], s%d offen offset:%d" % (WR + 4 * i, WR + 4 * i + 3, sWS, sWS + 3, 53 + i // 4, (i % 4) * 1024))
    vT = 2
    a("v_lshrrev_b32 v8, 5, v0")
    a("v_bfe_u32 v9, v0, 2, 2")
    a("v_lshl_add_u32 v%d, v8, 2, v9" % vT)
    a("v_lshlrev_b32 v%d, 7, v%d" % (vT, vT))
    a("v_bfe_u32 v9, v0, 4, 1")
    a("v_lshl_add_u32 v%d, v9, 5, v%d" % (vT, vT))
    a("v_and_b32 v9, 3, v0")
    a("v_lshl_add_u32 v%d, v9, 3, v%d" % (vT, vT))
    a("v_add_u32 v%d, s50, v%d" % (vT, vT))
    a("v_max_u32 v4, v4, v5")
    a("v_max3_u32 v4, v4, v6, v7")
    for x in (1, 2, 4, 8, 16):
        a("ds_swizzle_b32 v5, v4 offset:0x%x" % ((x << 10) | 0x1f))
        a("v_max_u32 v4, v4, v5")
    a("v_mov_b32 v5, v4")
    a("v_permlane32_swap_b32 v4, v5")
    a("v_max_u32 v4, v4, v5")
    a("v_lshrrev_b32 v4, 7, v4")
    a("v_max_u32 v4, 1, v4")
    a("v_min_u32 v4, 252, v4")
    a("v_sub_u32 v5, 250, v4")
    a("v_max_i32 v5, 1, v5")
    a("v_lshlrev_b32 v3, 23, v5")
    a("s_mov_b32 s55, %d" % WS_SC)
    a("v_mov_b32 v5, 0")
    a("buffer_store_dword v3, v5, s[%d:%d], s55 offen" % (sWS, sWS + 3))
    a("s_waitcnt vmcnt(9)")
    a("s_barrier")
    stamp(a, 1)
    XR, XI = 16, 32
    AR, AI = 48, 80
    CF = 112
    TW = 160
    TMP = 192
    cfi = [0]
    def cfrag(off):
        b = CF + 4 * (cfi[0] % 12); cfi[0] += 1
        a("ds_read_b128 v[%d:%d], v1 offset:%d" % (b, b + 3, off))
        return b
    def mf(d, x, y, first):
        c = "0" if first else "v[%d:%d]" % (d, d + 15)
        a("v_mfma_f32_32x32x16_f16 v[%d:%d], v[%d:%d], v[%d:%d], %s" % (d, d + 15, x, x + 3, y, y + 3, c))
    F1 = lambda kind, g: L_FC + FFT_F1 + (kind * 2 + g) * 1024
    F2 = lambda kind, t, g: L_FC + FFT_F2 + ((kind * 2 + t) * 4 + g) * 1024
    for part, base in ((0, XR), (1, XI)):
        for mt in range(2):
            for g in range(2):
                b = base + (mt * 2 + g) * 4
                off = part * 4096 + (16 * g) * 128 + mt * 64
                a("ds_read_b64_tr_b16 v[%d:%d], v%d offset:%d" % (b, b + 1, vT, off))
                a("ds_read_b64_tr_b16 v[%d:%d], v%d offset:%d" % (b + 2, b + 3, vT, off + 1024))
    f1 = {(k, g): cfrag(F1(k, g)) for k in range(3) for g in range(2)}
    for mt in range(2):
        for g in range(2):
            xr = XR + (mt * 2 + g) * 4; xi = XI + (mt * 2 + g) * 4
            mf(AR + 16 * mt, xr, f1[(0, g)], g == 0)
            mf(AI + 16 * mt, xi, f1[(0, g)], g == 0)
            mf(AR + 16 * mt, xi, f1[(1, g)], False)
            mf(AI + 16 * mt, xr, f1[(2, g)], False)
    def twiddle(tab, sign):
        def ld(i):
            b = TW + 8 * (i % 4)
            a("ds_read_b128 v[%d:%d], v1 offset:%d" % (b, b + 3, L_FC + tab + i * 2048))
            a("ds_read_b128 v[%d:%d], v1 offset:%d" % (b + 4, b + 7, L_FC + tab + i * 2048 + 1024))
        for i in range(3): ld(i)
        for i in range(8):
            if i + 3 < 8: ld(i + 3)
            c = TW + 8 * (i % 4); s_ = c + 4
            r = AR + 4 * i; m = AI + 4 * i
            for j in range(4): a("v_mul_f32 v%d, v%d, v%d" % (TMP + j, r + j, c + j))
            for j in range(4): a("v_mul_f32 v%d, v%d, v%d" % (TMP + 4 + j, m + j, c + j))
            sg1 = "" if sign < 0 else "-"
            sg2 = "-" if sign < 0 else ""
            for j in range(4): a("v_fma_f32 v%d, %sv%d, v%d, v%d" % (TMP + j, sg1, m + j, s_ + j, TMP + j))
            for j in range(4): a("v_fma_f32 v%d, %sv%d, v%d, v%d" % (TMP + 4 + j, sg2, r + j, s_ + j, TMP + 4 + j))
            a("v_cvt_pk_f16_f32 v%d, v%d, v%d" % (XR + 2 * i, TMP, TMP + 1))
            a("v_cvt_pk_f16_f32 v%d, v%d, v%d" % (XR + 2 * i + 1, TMP + 2, TMP + 3))
            a("v_cvt_pk_f16_f32 v%d, v%d, v%d" % (XI + 2 * i, TMP + 4, TMP + 5))
            a("v_cvt_pk_f16_f32 v%d, v%d, v%d" % (XI + 2 * i + 1, TMP + 6, TMP + 7))
    twiddle(FFT_TWF, -1)
    def stage64(const_is_A, ksin_r, ksin_i):
        for t in range(2):
            fr = {}
            for g in range(2):
                for k in range(3): fr[(k, g)] = cfrag(F2(k, t, g))
            for g in range(4):
                if g + 2 < 4:
                    for k in range(3): fr[(k, g + 2)] = cfrag(F2(k, t, g + 2))
                dr = XR + 4 * g; di = XI + 4 * g
                def mm(d, cst, dat, first):
                    if const_is_A: mf(d, cst, dat, first)
                    else: mf(d, dat, cst, first)
                mm(AR + 16 * t, fr[(0, g)], dr, g == 0)
                mm(AI + 16 * t, fr[(0, g)], di, g == 0)
                mm(AR + 16 * t, fr[(ksin_r, g)], di, False)
                mm(AI + 16 * t, fr[(ksin_i, g)], dr, False)
    stage64(True, 1, 2)
    for i in range(8):
        r = AR + 4 * i; m = AI + 4 * i; w = WR + 4 * i
        c = TW; s_ = TW + 4
        for j in range(4): a("v_lshlrev_b32 v%d, 16, v%d" % (c + j, w + j))
        for j in range(4): a("v_and_b32 v%d, 0xffff0000, v%d" % (s_ + j, w + j))
        for j in range(4): a("v_mul_f32 v%d, v%d, v3" % (c + j, c + j))
        for j in range(4): a("v_mul_f32 v%d, v%d, v3" % (s_ + j, s_ + j))
        for j in range(4): a("v_mul_f32 v%d, v%d, v%d" % (TMP + j, r + j, c + j))
        for j in range(4): a("v_mul_f32 v%d, v%d, v%d" % (TMP + 4 + j, m + j, c + j))
        for j in range(4): a("v_fma_f32 v%d, -v%d, v%d, v%d" % (TMP + j, m + j, s_ + j, TMP + j))
        for j in range(4): a("v_fma_f32 v%d, v%d, v%d, v%d" % (TMP + 4 + j, r + j, s_ + j, TMP + 4 + j))
        a("v_cvt_pk_f16_f32 v%d, v%d, v%d" % (XR + 2 * i, TMP, TMP + 1))
        a("v_cvt_pk_f16_f32 v%d, v%d, v%d" % (XR + 2 * i + 1, TMP + 2, TMP + 3))
        a("v_cvt_pk_f16_f32 v%d, v%d, v%d" % (XI + 2 * i, TMP + 4, TMP + 5))
        a("v_cvt_pk_f16_f32 v%d, v%d, v%d" % (XI + 2 * i + 1, TMP + 6, TMP + 7))
    stage64(False, 2, 1)
    twiddle(FFT_TWI, +1)
    f1 = {(k, g): cfrag(F1(k, g)) for k in range(3) for g in range(2)}
    for nt in range(2):
        for g in range(2):
            xr = XR + (nt * 2 + g) * 4; xi = XI + (nt * 2 + g) * 4
            mf(AR + 16 * nt, xr, f1[(0, g)], g == 0)
            mf(AI + 16 * nt, xi, f1[(0, g)], g == 0)
            mf(AR + 16 * nt, xi, f1[(2, g)], False)
            mf(AI + 16 * nt, xr, f1[(1, g)], False)
    a("s_mov_b32 s56, 0x%08x" % f32bits(A5 * 2))
    a("s_cmp_ge_u32 s%d, %d" % (sIM, 4000 * YSTR))
    a("s_cselect_b32 s56, 0x%08x, s56" % f32bits(A5))
    a("v_and_b32 v8, 31, v0")
    a("v_lshlrev_b32 v8, 7, v8")
    a("v_lshrrev_b32 v9, 5, v0")
    a("v_lshl_add_u32 v8, v9, 4, v8")
    a("s_add_u32 s51, s%d, %d" % (sRE, WS_ZT))
    a("s_add_u32 s52, s%d, %d" % (sIM, WS_ZT))
    for part, acc, sreg in ((0, AR, 51), (1, AI, 52)):
        for nt in range(2):
            for qp in range(2):
                c = acc + 16 * nt + 8 * qp
                o = XR + 16 * part + 8 * nt + 4 * qp
                for j in range(8): a("v_mul_f32 v%d, s56, v%d" % (c + j, c + j))
                for j in range(4): a("v_cvt_pk_f16_f32 v%d, v%d, v%d" % (o + j, c + 2 * j, c + 2 * j + 1))
                a("v_permlane32_swap_b32 v%d, v%d" % (o, o + 2))
                a("v_permlane32_swap_b32 v%d, v%d" % (o + 1, o + 3))
                a("buffer_store_dwordx4 v[%d:%d], v8, s[%d:%d], s%d offen offset:%d" % (o, o + 3, sWS, sWS + 3, sreg, nt * 64 + qp * 32))
    stamp(a, 3)
    if STAMPS:
        a("s_waitcnt vmcnt(0)")
        stamp(a, 4)
    stamp_flush(a, 1, sWAVE, sWS)
```

```python
from common import *
from k2 import tr_base, kc_bases, dma_tr_voff, dma_kc_voff

DEPTH = 4
STG = 16384
K3_LDS = DEPTH * STG
NST = 21
sWO, sWS, sTAB, sX, sOUT = 16, 20, 24, 28, 32
sWAVE, sDT, sST = 36, 37, 38

def build_k3(name):
    a = Asm()
    a("s_cmp_ge_u32 s2, 224")
    a("s_cbranch_scc1 K3_end")
    a("s_load_dwordx4 s[4:7], s[0:1], 56")
    a("s_load_dwordx2 s[8:9], s[0:1], 80")
    a("s_load_dwordx2 s[10:11], s[0:1], 0")
    a("v_lshrrev_b32 v1, 6, v0")
    a("v_and_b32 v0, 63, v0")
    a("v_readfirstlane_b32 s%d, v1" % sWAVE)
    a("s_getpc_b64 s[24:25]")
    a("s_add_u32 s24, s24, tab0@rel32@lo+4")
    a("s_addc_u32 s25, s25, tab0@rel32@hi+12")
    a("s_and_b32 s25, s25, 0xffff")
    a("s_mov_b32 s26, %d" % TAB_SIZE)
    a("s_mov_b32 s27, 0x20000")
    a("s_and_b32 s48, s2, 7")
    a("s_lshr_b32 s49, s2, 3")
    divmod7(a, 50, sDT, 49)
    a("s_and_b32 s52, s48, 1")
    a("s_lshl_b32 s52, s52, 2")
    a("s_lshr_b32 s53, s48, 1")
    a("s_lshl_b32 s53, s53, 3")
    a("s_add_u32 s52, s52, s53")
    a("s_add_u32 s%d, s52, s50" % sST)
    a("s_lshl_b32 s40, s%d, 1" % sDT)
    a("s_mul_i32 s52, s50, 3")
    a("s_add_u32 s40, s40, s52")
    a("s_lshl_b32 s52, s50, 1")
    a("s_add_u32 s41, s%d, s52" % sDT)
    a("s_waitcnt lgkmcnt(0)")
    srd(a, sWO, 4, FH * D * 2)
    srd(a, sOUT, 6, S * D * 2)
    srd(a, sWS, 8, WS_SIZE)
    srd(a, sX, 10, S * D * 2)
    stamp(a, 0, 127)
    a("s_cmp_ge_u32 s%d, 4" % sWAVE)
    a("s_cbranch_scc1 K3_loader")
    a.auto(False)
    ACG, ACS = 16, 32
    FB = [48, 80]
    vTRa, vKB, vFR, vTRb = 1, 2, 6, 7
    XR = 112
    vXO = 8; vSC = 9
    a("s_and_b32 s48, s%d, 1" % sWAVE)
    a("s_lshr_b32 s49, s%d, 1" % sWAVE)
    tr_base(a, vTRa, 10, 11)
    a("s_lshl_b32 s50, s49, 6")
    a("v_xor_b32 v%d, s50, v%d" % (vTRb, vTRa))
    a("v_add_u32 v%d, 8192, v%d" % (vTRb, vTRb))
    a("s_lshl_b32 s50, s48, 6")
    a("v_xor_b32 v%d, s50, v%d" % (vTRa, vTRa))
    kc_bases(a, vKB, 10, 11)
    a("s_lshl_b32 s50, s49, 12")
    a("s_add_u32 s50, s50, 8192")
    for e in range(4): a("v_add_u32 v%d, s50, v%d" % (vKB + e, vKB + e))
    a("v_lshlrev_b32 v%d, 4, v0" % vFR)
    a("s_lshl_b32 s50, s48, 10")
    a("v_add_u32 v%d, s50, v%d" % (vFR, vFR))
    a("s_lshl_b32 s50, s%d, 6" % sST)
    a("s_lshl_b32 s51, s49, 5")
    a("s_add_u32 s50, s50, s51")
    a("v_and_b32 v10, 31, v0")
    a("v_add_u32 v10, s50, v10")
    a("v_mul_u32_u24 v10, 896, v10")
    a("v_lshrrev_b32 v11, 5, v0")
    a("v_lshl_add_u32 v%d, v11, 4, v10" % vXO)
    a("s_lshl_b32 s50, s%d, 7" % sDT)
    a("s_lshl_b32 s51, s48, 6")
    a("s_add_u32 s50, s50, s51")
    a("v_add_u32 v%d, s50, v%d" % (vXO, vXO))
    for qp in range(2):
        a("buffer_load_dwordx4 v[%d:%d], v%d, s[%d:%d], 0 offen offset:%d" % (XR + 4 * qp, XR + 4 * qp + 3, vXO, sX, sX + 3, qp * 32))
    a("v_mov_b32 v10, 0")
    a("s_mov_b32 s50, %d" % WS_SC)
    a("buffer_load_dword v%d, v10, s[%d:%d], s50 offen" % (vSC, sWS, sWS + 3))
    def reads(k):
        base = (k % 4) * STG; buf = k % 2
        for e in range(4):
            b = FB[buf] + 8 * e
            if k < 14:
                a("ds_read_b64_tr_b16 v[%d:%d], v%d offset:%d" % (b, b + 1, vTRa, base + 16 * e * 128))
                a("ds_read_b64_tr_b16 v[%d:%d], v%d offset:%d" % (b + 2, b + 3, vTRa, base + 16 * e * 128 + 512))
                a("ds_read_b128 v[%d:%d], v%d offset:%d" % (b + 4, b + 7, vKB + e, base))
            else:
                a("ds_read_b128 v[%d:%d], v%d offset:%d" % (b, b + 3, vFR, base + e * 2048))
                a("ds_read_b64_tr_b16 v[%d:%d], v%d offset:%d" % (b + 4, b + 5, vTRb, base + 16 * e * 128))
                a("ds_read_b64_tr_b16 v[%d:%d], v%d offset:%d" % (b + 6, b + 7, vTRb, base + 16 * e * 128 + 512))
    def mfmas(k):
        buf = k % 2
        for e in range(4):
            b = FB[buf] + 8 * e
            c = ACG if k < 14 else ACS
            first = (k in (0, 14)) and e == 0
            cs = "0" if first else "v[%d:%d]" % (c, c + 15)
            ty = "bf16" if k < 14 else "f16"
            a("v_mfma_f32_32x32x16_%s v[%d:%d], v[%d:%d], v[%d:%d], %s" % (ty, c, c + 15, b, b + 3, b + 4, b + 7, cs))
    for k in range(NST):
        a("s_barrier")
        if k == 0: stamp(a, 1, 127)
        reads(k)
        if k > 0: mfmas(k - 1)
        a("s_waitcnt lgkmcnt(0)")
    mfmas(NST - 1)
    stamp(a, 2, 127)
    a.auto(True)
    a("s_waitcnt vmcnt(0)")
    a("v_rcp_f32 v%d, v%d" % (vSC, vSC))
    a("v_mul_f32 v%d, 0x%08x, v%d" % (vSC, f32bits(A3 / 14.0), vSC))
    L2E = f32bits(-np.log2(np.e))
    G = 48; Sv = 64; E = 80
    for i in range(8): a("v_cvt_pk_bf16_f32 v%d, v%d, v%d" % (E + i, ACG + 2 * i, ACG + 2 * i + 1))
    for i in range(8):
        a("v_lshlrev_b32 v%d, 16, v%d" % (G + 2 * i, E + i))
        a("v_and_b32 v%d, 0xffff0000, v%d" % (G + 2 * i + 1, E + i))
    for i in range(16): a("v_mul_f32 v%d, 0x%08x, v%d" % (E + i, L2E, G + i))
    for i in range(16): a("v_exp_f32 v%d, v%d" % (E + i, E + i))
    for i in range(16): a("v_add_f32 v%d, 1.0, v%d" % (E + i, E + i))
    for i in range(16): a("v_rcp_f32 v%d, v%d" % (E + i, E + i))
    for i in range(16): a("v_mul_f32 v%d, v%d, v%d" % (G + i, G + i, E + i))
    for i in range(16): a("v_mul_f32 v%d, v%d, v%d" % (Sv + i, ACS + i, vSC))
    for i in range(8): a("v_cvt_pk_bf16_f32 v%d, v%d, v%d" % (E + i, G + 2 * i, G + 2 * i + 1))
    for i in range(8): a("v_cvt_pk_bf16_f32 v%d, v%d, v%d" % (E + 8 + i, Sv + 2 * i, Sv + 2 * i + 1))
    for i in range(8):
        a("v_lshlrev_b32 v%d, 16, v%d" % (G + 2 * i, E + i))
        a("v_and_b32 v%d, 0xffff0000, v%d" % (G + 2 * i + 1, E + i))
        a("v_lshlrev_b32 v%d, 16, v%d" % (Sv + 2 * i, E + 8 + i))
        a("v_and_b32 v%d, 0xffff0000, v%d" % (Sv + 2 * i + 1, E + 8 + i))
    for i in range(16): a("v_mul_f32 v%d, v%d, v%d" % (G + i, G + i, Sv + i))
    for i in range(8): a("v_cvt_pk_bf16_f32 v%d, v%d, v%d" % (E + i, G + 2 * i, G + 2 * i + 1))
    for qp in range(2):
        p = E + 4 * qp
        a("v_permlane32_swap_b32 v%d, v%d" % (p, p + 2))
        a("v_permlane32_swap_b32 v%d, v%d" % (p + 1, p + 3))
        x = XR + 4 * qp
        for i in range(4):
            a("v_lshlrev_b32 v%d, 16, v%d" % (G + 2 * i, p + i))
            a("v_and_b32 v%d, 0xffff0000, v%d" % (G + 2 * i + 1, p + i))
            a("v_lshlrev_b32 v%d, 16, v%d" % (Sv + 2 * i, x + i))
            a("v_and_b32 v%d, 0xffff0000, v%d" % (Sv + 2 * i + 1, x + i))
        for i in range(8): a("v_add_f32 v%d, v%d, v%d" % (G + i, G + i, Sv + i))
        o = 96 + 4 * qp
        for i in range(4): a("v_cvt_pk_bf16_f32 v%d, v%d, v%d" % (o + i, G + 2 * i, G + 2 * i + 1))
        a("buffer_store_dwordx4 v[%d:%d], v%d, s[%d:%d], 0 offen offset:%d" % (o, o + 3, vXO, sOUT, sOUT + 3, qp * 32))
    stamp(a, 3, 127)
    if STAMPS:
        a("s_waitcnt vmcnt(0)")
        stamp(a, 4, 127)
    stamp_flush(a, 2, sWAVE, sWS, 127, 126)
    a("s_endpgm")
    a.label("K3_loader")
    a.auto(False)
    a("s_sub_u32 s%d, s%d, 4" % (sWAVE, sWAVE))
    dma_tr_voff(a, 1, 896, 10, 11)
    a("s_mul_i32 s48, s%d, %d" % (sWAVE, 16 * 896))
    a("s_lshl_b32 s49, s%d, 7" % sDT)
    a("s_add_u32 s48, s48, s49")
    a("v_add_u32 v1, s48, v1")
    a("v_add_u32 v2, %d, v1" % (8 * 896))
    dma_kc_voff(a, 3, 1792, 0, 10, 11)
    dma_kc_voff(a, 4, 1792, 1, 10, 11)
    a("s_lshl_b32 s48, s%d, 6" % sST)
    a("s_lshl_b32 s49, s%d, 4" % sWAVE)
    a("s_add_u32 s48, s48, s49")
    a("s_mul_i32 s48, s48, 1792")
    a("s_add_u32 s48, s48, %d" % WS_U)
    a("v_add_u32 v3, s48, v3")
    a("s_add_u32 s48, s48, %d" % (8 * 1792))
    a("v_add_u32 v4, s48, v4")
    a("v_lshlrev_b32 v5, 4, v0")
    a("s_mul_i32 s48, s%d, 57344" % sDT)
    a("s_lshl_b32 s49, s%d, 11" % sWAVE)
    a("s_add_u32 s48, s48, s49")
    a("s_add_u32 s48, s48, %d" % TAB_T2)
    a("v_add_u32 v5, s48, v5")
    a("v_add_u32 v6, 1024, v5")
    dma_tr_voff(a, 7, YSTR, 10, 11)
    a("s_mul_i32 s48, s%d, %d" % (sWAVE, 16 * YSTR))
    a("s_lshl_b32 s49, s%d, 7" % sST)
    a("s_add_u32 s48, s48, s49")
    a("s_add_u32 s48, s48, %d" % WS_ZT)
    a("v_add_u32 v7, s48, v7")
    a("v_add_u32 v8, %d, v7" % (8 * YSTR))
    a("s_lshl_b32 s50, s%d, 11" % sWAVE)
    def issue(k):
        slot = k % 4
        if k < 14:
            a("s_add_u32 s53, s40, %d" % k)
            a("s_cmp_ge_u32 s53, 28\ns_cselect_b32 s54, 28, 0\ns_sub_u32 s53, s53, s54")
            a("s_cmp_ge_u32 s53, 14\ns_cselect_b32 s54, 14, 0\ns_sub_u32 s53, s53, s54")
            a("s_mul_i32 s54, s53, %d" % (64 * 896))
            a("s_lshl_b32 s55, s53, 7")
            ops = [(1, sWO, 54, 0), (2, sWO, 54, 1024), (3, sWS, 55, 8192), (4, sWS, 55, 9216)]
        else:
            a("s_add_u32 s53, s41, %d" % (k - 14))
            a("s_cmp_ge_u32 s53, 14\ns_cselect_b32 s54, 14, 0\ns_sub_u32 s53, s53, s54")
            a("s_cmp_ge_u32 s53, 7\ns_cselect_b32 s54, 7, 0\ns_sub_u32 s53, s53, s54")
            a("s_lshl_b32 s54, s53, 13")
            a("s_mul_i32 s55, s53, %d" % (64 * YSTR))
            ops = [(5, sTAB, 54, 0), (6, sTAB, 54, 1024), (7, sWS, 55, 8192), (8, sWS, 55, 9216)]
        for v, sr, so, lo in ops:
            a("s_add_u32 m0, s50, %d" % (slot * STG + lo))
            a("buffer_load_dwordx4 v%d, s[%d:%d], s%d offen lds" % (v, sr, sr + 3, so))
    for k in range(3): issue(k)
    for k in range(NST):
        n_after = min(2, NST - 1 - k)
        a("s_waitcnt vmcnt(%d)" % (4 * n_after))
        a("s_barrier")
        if k + 3 < NST: issue(k + 3)
    a.label("K3_end")
    a("s_endpgm")
    a.label("K3_codeend")
    return kernel_begin(name) + a.text()
```

```python
import sys
sys.path.insert(0, "gen")
from common import *
import k1
def build(path, which=("k1",)):
    hdr = open("recurrent_scan__spectral_gfnet__mixer_gmlp__prompt.s.ref").read().split("; Override")[0]
    launches = []; code = ""; desc = ""
    if "k1" in which:
        launches.append("; @launch kernel=k1_kernel grid=(256,1,1) block=(512,1,1) lds=%d" % k1.K1_LDS)
        code += k1.build_k1("k1_kernel"); desc += ".p2align 6\n" + kernel_desc("k1_kernel", 256, 96, 256)
    if "k2" in which:
        import k2
        launches.append("; @launch kernel=k2_kernel grid=(253,1,1) block=(512,1,1) lds=%d" % k2.K2_LDS)
        code += k2.build_k2("k2_kernel"); desc += ".p2align 6\n" + kernel_desc("k2_kernel", 256, 96, 256)
    if "k3" in which:
        import k3
        launches.append("; @launch kernel=k3_kernel grid=(224,1,1) block=(512,1,1) lds=%d" % k3.K3_LDS)
        code += k3.build_k3("k3_kernel"); desc += ".p2align 6\n" + kernel_desc("k3_kernel", 128, 96, 128)
    txt = hdr + "\n".join(launches) + "\n" + HEADER + code + '.section .rodata,"a"\n' + desc + tables_asm()
    open(path, "w").write(txt)
if __name__ == "__main__":
    build(sys.argv[1], sys.argv[2].split(","))
```

```python
import numpy as np
from asmlib import *

S, D, FH = 2048, 448, 896
WS_Z1 = 0x0000000
WS_Z2 = 0x0400000
WS_YT = 0x0800000
WS_WT = 0x0A00000
WS_U  = 0x0C00000
WS_ZT = 0x1000000
FSTR = 128
WS_SYNC = 0x1200000
WS_ST = WS_SYNC
WS_FA = WS_ST + 229376
WS_FY = WS_FA + 896 * FSTR
WS_FB = WS_FY + 896 * FSTR
WS_FZ = WS_FB + 1024 * FSTR
WS_WMAX = WS_FZ + 32 * FSTR
SYNC_BYTES = ((WS_WMAX + 32 * FSTR - WS_SYNC + 262143) // 262144) * 262144
WS_SC = 0x1310000
WS_SIZE = 0x1400000
YSTR = 4224

def f32_to_bf16_bits(x):
    x = np.asarray(x, dtype=np.float32)
    u = x.view(np.uint32).astype(np.uint64)
    r = (u + 0x7FFF + ((u >> 16) & 1)) >> 16
    return r.astype(np.uint16)
def bf16_bits_to_f32(b):
    return (np.asarray(b).astype(np.uint32) << 16).view(np.float32)
def f32bits(x):
    return int(np.float32(x).view(np.uint32))

def col_k(cp):
    if cp == 0: return 0, 0
    if cp == 1: return 224, 0
    return cp // 2, cp & 1

def srd(a, base, lo, nbytes):
    a("s_mov_b32 s%d, s%d" % (base, lo))
    a("s_and_b32 s%d, s%d, 0xffff" % (base + 1, lo + 1))
    a("s_mov_b32 s%d, %d" % (base + 2, nbytes))
    a("s_mov_b32 s%d, 0x20000" % (base + 3))

def divmod7(a, q, r, src):
    a("s_mul_hi_u32 s%d, s%d, 0x24924925" % (q, src))
    a("s_mul_i32 s%d, s%d, 7" % (r, q))
    a("s_sub_u32 s%d, s%d, s%d" % (r, src, r))

def bf16_round(a, dst, src):
    a("v_cvt_pk_bf16_f32 v%d, v%d, v%d" % (dst, src, src))
    a("v_lshlrev_b32 v%d, 16, v%d" % (dst, dst))

def ln_finish(a, vsum, vsq, n, vm, vr, t0, t1):
    a("v_mul_f32 v%d, 0x%08x, v%d" % (t0, f32bits(1.0 / n), vsum))
    a("v_mul_f32 v%d, 0x%08x, v%d" % (t1, f32bits(1.0 / n), vsq))
    a("v_fma_f32 v%d, -v%d, v%d, v%d" % (t1, t0, t0, t1))
    a("v_max_f32 v%d, 0, v%d" % (t1, t1))
    bf16_round(a, vm, t0)
    bf16_round(a, t1, t1)
    a("v_add_f32 v%d, 0x%08x, v%d" % (t1, f32bits(1e-5), t1))
    bf16_round(a, t1, t1)
    a("v_sqrt_f32 v%d, v%d" % (t1, t1))
    bf16_round(a, t1, t1)
    a("v_rcp_f32 v%d, v%d" % (vr, t1))

def half_sum(a, v, t):
    a("v_mov_b32 v%d, v%d" % (t, v))
    a("v_permlane32_swap_b32 v%d, v%d" % (v, t))
    a("v_add_f32 v%d, v%d, v%d" % (v, v, t))

TAB_T1 = 0
TAB_T2 = 401408
TAB_CST = 802816
TAB_FFT = 804864
FFT_F1 = 0; FFT_F2 = 6144; FFT_TWF = 30720; FFT_TWI = 47104; FFT_BYTES = 63488
TAB_SIZE = TAB_FFT + FFT_BYTES

A1, A2, A3, A4, A5 = 1 / 16., 1 / 8., 1 / 8., 1 / 8., 1 / 8.

def cos448():
    return np.cos(2 * np.pi * np.arange(448) / 448.0)

def t1_model():
    c = bf16_bits_to_f32(f32_to_bf16_bits(cos448().astype(np.float32)))
    T = np.zeros((448, 448), np.float32)
    d = np.arange(448)
    for cp in range(448):
        k, im = col_k(cp)
        T[cp] = c[(k * d + 112 * im) % 448]
    return T
def t2_model():
    c = cos448().astype(np.float16).astype(np.float32)
    T = np.zeros((448, 448), np.float32)
    d = np.arange(448)
    for cp in range(448):
        k, im = col_k(cp)
        T[cp] = c[(k * d + 112 * im) % 448]
    return T

def kappa(g, h, j):
    return 16 * g + 8 * (j // 4) + 4 * h + (j % 4)

def fft_tables():
    out = bytearray()
    def frag(N, tile, g, fn):
        f = np.zeros((64, 8), np.float16)
        for l in range(64):
            i, h = l % 32, l // 32
            for j in range(8):
                f[l, j] = fn(2 * np.pi * (((32 * tile + i) * kappa(g, h, j)) % N) / N)
        return f.tobytes()
    fns = [np.cos, np.sin, lambda t: -np.sin(t)]
    for fn in fns:
        for g in range(2): out += frag(32, 0, g, fn)
    assert len(out) == FFT_F2
    for fn in fns:
        for tile in range(2):
            for g in range(4): out += frag(64, tile, g, fn)
    assert len(out) == FFT_TWF
    for mt in range(2):
        for q in range(4):
            for fn in (np.cos, np.sin):
                f = np.zeros((64, 4), np.float32)
                for l in range(64):
                    for i in range(4):
                        n2 = 32 * mt + 8 * q + 4 * (l // 32) + i
                        f[l, i] = fn(2 * np.pi * ((n2 * (l % 32)) % 2048) / 2048) * A2
                out += f.tobytes()
    assert len(out) == FFT_TWI
    for nt in range(2):
        for q in range(4):
            for fn in (np.cos, np.sin):
                f = np.zeros((64, 4), np.float32)
                for l in range(64):
                    for i in range(4):
                        k1 = 8 * q + 4 * (l // 32) + i
                        f[l, i] = fn(2 * np.pi * (((32 * nt + l % 32) * k1) % 2048) / 2048) * A4
                out += f.tobytes()
    assert len(out) == FFT_BYTES
    return bytes(out)

def tables_asm():
    L = []
    cb = f32_to_bf16_bits(cos448().astype(np.float32))
    ch = cos448().astype(np.float16).view(np.uint16)
    for i in range(448):
        L.append(".set XB_%d, %d\n.set XH_%d, %d" % (i, cb[i], i, ch[i]))
    L.append(r"""
.altmacro
.macro eb8 p0,p1,p2,p3,p4,p5,p6,p7
.short XB_\p0, XB_\p1, XB_\p2, XB_\p3, XB_\p4, XB_\p5, XB_\p6, XB_\p7
.endm
.macro eh8 p0,p1,p2,p3,p4,p5,p6,p7
.short XH_\p0, XH_\p1, XH_\p2, XH_\p3, XH_\p4, XH_\p5, XH_\p6, XH_\p7
.endm
.p2align 8
tab0:
; T1: [cg][kc][e][lane][8]: c' = 32cg + lane%32 ; d = 64kc + 16e + 8h + j
.set tq, 0
.rept 14*7*4*64
.set tl, tq % 64
.set te, (tq / 64) % 4
.set tkc, (tq / 256) % 7
.set tcg, tq / 1792
.set tcp, 32*tcg + tl % 32
.set tk, tcp / 2
.set tim, tcp % 2
.if tcp == 1
.set tk, 224
.set tim, 0
.endif
.set td, 64*tkc + 16*te + 8*(tl/32)
.set tb, tk*td + 112*tim
eb8 %(tb % 448), %((tb+tk) % 448), %((tb+2*tk) % 448), %((tb+3*tk) % 448), %((tb+4*tk) % 448), %((tb+5*tk) % 448), %((tb+6*tk) % 448), %((tb+7*tk) % 448)
.set tq, tq+1
.endr
; T2: [dt][stage][e][st][lane][8]: d = 64dt + 32st + lane%32 ; c' = 64 stage + 16e + 8h + j
.set tq, 0
.rept 7*7*4*2*64
.set tl, tq % 64
.set tst, (tq / 64) % 2
.set te, (tq / 128) % 4
.set tsg, (tq / 512) % 7
.set tdt, tq / 3584
.set td, 64*tdt + 32*tst + tl % 32
.set tk, (64*tsg + 16*te + 8*(tl/32)) / 2
.set tb, tk*td
.set tb1, tb + 112
.if tk == 0
.set tb1, 224*td
.endif
eh8 %(tb % 448), %(tb1 % 448), %((tb+td) % 448), %((tb+td+112) % 448), %((tb+2*td) % 448), %((tb+2*td+112) % 448), %((tb+3*td) % 448), %((tb+3*td+112) % 448)
.set tq, tq+1
.endr
.noaltmacro
""")
    cs = t1_model().astype(np.float64).sum(axis=1).astype(np.float32)
    cs = np.concatenate([cs, np.zeros(64, np.float32)])
    data = cs.tobytes() + fft_tables()
    w = np.frombuffer(data, np.uint32)
    for i in range(0, len(w), 8):
        L.append(".long " + ",".join("0x%x" % x for x in w[i:i + 8]))
    return "\n".join(L) + "\n"

import os
STAMPS = int(os.environ.get("STAMPS", "0"))
WS_DBG = 0x1320000
import inspect
def stamp(a, idx, vreg=255, s0=90):
    if not STAMPS: return
    if STAMPS == 3 and idx >= 2: return
    if STAMPS == 2 and idx >= 2 and "STAMPS == 2" not in inspect.stack()[1].code_context[0]: return
    a("s_memrealtime s[%d:%d]" % (s0, s0 + 1))
    a("s_waitcnt lgkmcnt(0)")
    a("v_writelane_b32 v%d, s%d, %d" % (vreg, s0, idx))
    if STAMPS == 4:
        a("s_memtime s[%d:%d]" % (s0, s0 + 1))
        a("s_waitcnt lgkmcnt(0)")
        a("v_writelane_b32 v%d, s%d, %d" % (vreg, s0, idx + 16))
def stamp_flush(a, kidx, swave, srdws, vreg=255, vt=254, s0=90, waveadd=0):
    if not STAMPS: return
    a("s_lshl_b32 s%d, s2, 3" % s0)
    a("s_add_u32 s%d, s%d, s%d" % (s0, s0, swave))
    if waveadd: a("s_add_u32 s%d, s%d, %d" % (s0, s0, waveadd))
    a("s_lshl_b32 s%d, s%d, %d" % (s0, s0, 7 if STAMPS == 4 else 6))
    a("s_add_u32 s%d, s%d, %d" % (s0, s0, WS_DBG + kidx * 0x20000))
    a("v_mbcnt_lo_u32_b32 v%d, -1, 0" % vt)
    a("v_mbcnt_hi_u32_b32 v%d, -1, v%d" % (vt, vt))
    a("v_lshlrev_b32 v%d, 2, v%d" % (vt, vt))
    a("v_cmp_gt_u32 vcc, %d, v%d" % (128 if STAMPS == 4 else 64, vt))
    a("s_and_saveexec_b64 s[%d:%d], vcc" % (s0 + 2, s0 + 3))
    a("buffer_store_dword v%d, v%d, s[%d:%d], s%d offen" % (vreg, vt, srdws, srdws + 3, s0))
    a("s_mov_b64 exec, s[%d:%d]" % (s0 + 2, s0 + 3))

def code_prefetch(a, start_label, end_label, sbase, vt, vdst, swg_shift=3, npieces=32, stmp=88):
    a("s_getpc_b64 s[%d:%d]" % (sbase, sbase + 1))
    a("s_add_u32 s%d, s%d, %s@rel32@lo+4" % (sbase, sbase, start_label))
    a("s_addc_u32 s%d, s%d, %s@rel32@hi+12" % (sbase + 1, sbase + 1, start_label))
    a("s_and_b32 s%d, s%d, 0xffff" % (sbase + 1, sbase + 1))
    a("s_mov_b32 s%d, %s-%s" % (sbase + 2, end_label, start_label))
    a("s_mov_b32 s%d, 0x20000" % (sbase + 3))
    a("s_lshr_b32 s%d, s2, %d" % (stmp, swg_shift))
    a("s_and_b32 s%d, s%d, %d" % (stmp, stmp, npieces - 1))
    a("s_lshl_b32 s%d, s%d, 10" % (stmp, stmp))
    a("v_lshlrev_b32 v%d, 4, v0" % vt)
    a("buffer_load_dwordx4 v[%d:%d], v%d, s[%d:%d], s%d offen" % (vdst, vdst + 3, vt, sbase, sbase + 3, stmp))

def stampc(a, idx, vreg=255, s0=90):
    if not STAMPS: return
    a("s_memtime s[%d:%d]" % (s0, s0 + 1))
    a("s_waitcnt lgkmcnt(0)")
    a("v_writelane_b32 v%d, s%d, %d" % (vreg, s0, idx))
```

```python
from common import *

DEPTH = 4
STG = 24576
L_FC = 0
L_COL = 63488
K2_LDS = L_COL + 8 * 8192

sWSP, sWS, sTAB, sB = 16, 20, 24, 28
sWAVE, sFT, sTT, sROT = 36, 37, 38, 39

def tr_base(a, dst, t0, t1):
    a("v_lshrrev_b32 v%d, 5, v0" % t0)
    a("v_bfe_u32 v%d, v0, 2, 2" % t1)
    a("v_lshl_add_u32 v%d, v%d, 3, v%d" % (dst, t0, t1))
    a("v_lshlrev_b32 v%d, 7, v%d" % (dst, dst))
    a("v_lshrrev_b32 v%d, 1, v%d" % (t1, t1))
    a("v_lshl_add_u32 v%d, v%d, 6, v%d" % (dst, t1, dst))
    a("v_bfe_u32 v%d, v0, 4, 1" % t1)
    a("v_lshl_add_u32 v%d, v%d, 5, v%d" % (dst, t1, dst))
    a("v_and_b32 v%d, 3, v0" % t1)
    a("v_lshl_add_u32 v%d, v%d, 3, v%d" % (dst, t1, dst))

def kc_bases(a, dst4, t0, t1):
    a("v_and_b32 v%d, 31, v0" % t0)
    a("v_bfe_u32 v%d, v0, 1, 3" % t1)
    a("v_lshrrev_b32 v%d, 5, v0" % dst4)
    a("v_xor_b32 v%d, v%d, v%d" % (t1, t1, dst4))
    for e in range(4):
        a("v_xor_b32 v%d, %d, v%d" % (dst4 + e, 2 * e, t1))
        a("v_lshlrev_b32 v%d, 4, v%d" % (dst4 + e, dst4 + e))
        a("v_lshl_add_u32 v%d, v%d, 7, v%d" % (dst4 + e, t0, dst4 + e))

def dma_tr_voff(a, dst, rowstride, t0, t1):
    a("v_lshrrev_b32 v%d, 3, v0" % dst)
    a("v_mul_u32_u24 v%d, %d, v%d" % (dst, rowstride, dst))
    a("v_and_b32 v%d, 7, v0" % t0)
    a("v_bfe_u32 v%d, v0, 4, 1" % t1)
    a("v_lshlrev_b32 v%d, 2, v%d" % (t1, t1))
    a("v_xor_b32 v%d, v%d, v%d" % (t0, t0, t1))
    a("v_lshl_add_u32 v%d, v%d, 4, v%d" % (dst, t0, dst))

def dma_kc_voff(a, dst, rowstride, odd, t0, t1):
    a("v_lshrrev_b32 v%d, 3, v0" % dst)
    a("v_mul_u32_u24 v%d, %d, v%d" % (dst, rowstride, dst))
    a("v_and_b32 v%d, 7, v0" % t0)
    a("v_lshrrev_b32 v%d, 4, v0" % t1)
    if odd: a("v_add_u32 v%d, 4, v%d" % (t1, t1))
    a("v_xor_b32 v%d, v%d, v%d" % (t0, t0, t1))
    a("v_lshl_add_u32 v%d, v%d, 4, v%d" % (dst, t0, dst))

def build_k2(name):
    a = Asm()
    a("s_cmp_ge_u32 s2, 253")
    a("s_cbranch_scc1 K2_end")
    a("s_load_dwordx4 s[4:7], s[0:1], 40")
    a("s_load_dwordx2 s[8:9], s[0:1], 80")
    a("v_lshrrev_b32 v1, 6, v0")
    a("v_and_b32 v0, 63, v0")
    a("v_readfirstlane_b32 s%d, v1" % sWAVE)
    a("s_getpc_b64 s[24:25]")
    a("s_add_u32 s24, s24, tab0@rel32@lo+4")
    a("s_addc_u32 s25, s25, tab0@rel32@hi+12")
    a("s_and_b32 s25, s25, 0xffff")
    a("s_mov_b32 s26, %d" % TAB_SIZE)
    a("s_mov_b32 s27, 0x20000")
    a("s_and_b32 s48, s2, 7")
    a("s_lshr_b32 s49, s2, 3")
    divmod7(a, 50, 51, 49)
    a("s_and_b32 s52, s48, 1")
    a("s_mul_i32 s52, s52, 7")
    a("s_add_u32 s%d, s52, s51" % sFT)
    a("s_lshr_b32 s52, s48, 1")
    a("s_lshl_b32 s52, s52, 2")
    a("s_add_u32 s%d, s52, s50" % sTT)
    a("s_mul_i32 s52, s51, 5")
    a("s_lshl_b32 s53, s50, 3")
    a("s_add_u32 s%d, s52, s53" % sROT)
    a("s_waitcnt lgkmcnt(0)")
    srd(a, sWSP, 4, S * S * 2)
    srd(a, sB, 6, S * 2)
    srd(a, sWS, 8, WS_SIZE)
    stamp(a, 0)
    a("s_cmp_ge_u32 s2, 224")
    a("s_cbranch_scc1 K2_fft")
    a("s_cmp_ge_u32 s%d, 4" % sWAVE)
    a("s_cbranch_scc1 K2_loader")
    a.auto(False)
    ACC = 16
    FB = [48, 96]
    vTA = 1; vKB = 2
    Z1R = 144
    vZO = 6; vBV = 8
    tr_base(a, vTA, 10, 11)
    a("s_and_b32 s48, s%d, 1" % sWAVE)
    a("s_lshl_b32 s49, s48, 6")
    a("v_xor_b32 v%d, s49, v%d" % (vTA, vTA))
    kc_bases(a, vKB, 10, 11)
    a("s_lshr_b32 s49, s%d, 1" % sWAVE)
    a("s_lshl_b32 s50, s49, 13")
    a("s_add_u32 s50, s50, 8192")
    for e in range(4): a("v_add_u32 v%d, s50, v%d" % (vKB + e, vKB + e))
    a("s_lshl_b32 s50, s%d, 7" % sTT)
    a("s_lshl_b32 s51, s49, 6")
    a("s_add_u32 s50, s50, s51")
    a("v_and_b32 v10, 31, v0")
    a("v_add_u32 v10, s50, v10")
    a("v_lshlrev_b32 v12, 1, v10")
    a("v_mul_u32_u24 v10, 1792, v10")
    a("v_lshrrev_b32 v11, 5, v0")
    a("v_lshl_add_u32 v%d, v11, 4, v10" % vZO)
    a("s_lshl_b32 s50, s%d, 7" % sFT)
    a("s_lshl_b32 s51, s48, 6")
    a("s_add_u32 s50, s50, s51")
    a("v_add_u32 v%d, s50, v%d" % (vZO, vZO))
    a("v_add_u32 v%d, %d, v%d" % (vZO + 1, 32 * 1792, vZO))
    a("s_mov_b32 s50, %d" % WS_Z1)
    for ts in range(2):
        for qp in range(2):
            r = Z1R + 8 * ts + 4 * qp
            a("buffer_load_dwordx4 v[%d:%d], v%d, s[%d:%d], s50 offen offset:%d" % (r, r + 3, vZO + ts, sWS, sWS + 3, qp * 32))
    a("buffer_load_ushort v%d, v12, s[%d:%d], 0 offen" % (vBV, sB, sB + 3))
    a("buffer_load_ushort v%d, v12, s[%d:%d], 0 offen offset:64" % (vBV + 1, sB, sB + 3))
    for r in range(32): a("v_mov_b32 v%d, 0" % (ACC + r))
    def reads(slot, buf):
        base = slot * STG
        if os.environ.get("NOREAD"): return
        if os.environ.get("HALFREAD"):
            for e in range(4):
                b = FB[buf] + 12 * e
                a("ds_read_b128 v[%d:%d], v%d offset:%d" % (b + 4, b + 7, vKB + e, base))
                a("ds_read_b128 v[%d:%d], v%d offset:%d" % (b + 8, b + 11, vKB + e, base + 4096))
            return
        if os.environ.get("TRREAD"):
            for e in range(4):
                b = FB[buf] + 12 * e
                a("ds_read_b64_tr_b16 v[%d:%d], v%d offset:%d" % (b, b + 1, vTA, base + 16 * e * 128))
                a("ds_read_b64_tr_b16 v[%d:%d], v%d offset:%d" % (b + 2, b + 3, vTA, base + 16 * e * 128 + 512))
            return
        for e in range(4):
            b = FB[buf] + 12 * e
            a("ds_read_b64_tr_b16 v[%d:%d], v%d offset:%d" % (b, b + 1, vTA, base + 16 * e * 128))
            a("ds_read_b64_tr_b16 v[%d:%d], v%d offset:%d" % (b + 2, b + 3, vTA, base + 16 * e * 128 + 512))
            a("ds_read_b128 v[%d:%d], v%d offset:%d" % (b + 4, b + 7, vKB + e, base))
            a("ds_read_b128 v[%d:%d], v%d offset:%d" % (b + 8, b + 11, vKB + e, base + 4096))
    def mfmas(buf):
        if os.environ.get("NOMFMA"): return
        for e in range(4):
            b = FB[buf] + 12 * e
            for ts in range(2):
                c = ACC + 16 * ts
                a("v_mfma_f32_32x32x16_bf16 v[%d:%d], v[%d:%d], v[%d:%d], v[%d:%d]" % (c, c + 15, b, b + 3, b + 4 + 4 * ts, b + 7 + 4 * ts, c, c + 15))
    vTA2 = 13; vKB2 = 160
    a("v_add_u32 v%d, 49152, v%d" % (vTA2, vTA))
    for e in range(4): a("v_add_u32 v%d, 49152, v%d" % (vKB2 + e, vKB + e))
    def reads2(slot, buf):
        nonlocal vTA, vKB
        if slot >= 2:
            o1, o2 = vTA, vKB
            vTA, vKB = vTA2, vKB2
            reads(slot - 2, buf)
            vTA, vKB = o1, o2
        else: reads(slot, buf)
    a("s_barrier")
    stamp(a, 1)
    reads2(0, 0)
    a("s_waitcnt lgkmcnt(0)")
    a("s_mov_b32 s52, 0")
    a.label("K2_cloop")
    for u in range(4):
        slot = (1 + u) % 4
        if u == 3:
            a("s_cmp_eq_u32 s52, 7")
            a("s_cbranch_scc1 K2_cdone")
        a("s_barrier")
        reads2(slot, (1 + u) % 2)
        mfmas(u % 2)
        a("s_waitcnt lgkmcnt(0)")
    a("s_add_u32 s52, s52, 1")
    a("s_branch K2_cloop")
    a.label("K2_cdone")
    mfmas(1)
    stamp(a, 2)
    a.auto(True)
    a("s_waitcnt vmcnt(0)")
    a("v_lshlrev_b32 v%d, 16, v%d" % (vBV, vBV))
    a("v_lshlrev_b32 v%d, 16, v%d" % (vBV + 1, vBV + 1))
    a("s_mov_b32 s50, %d" % WS_U)
    G = 48
    for ts in range(2):
        for qp in range(2):
            c = ACC + 16 * ts + 8 * qp
            g = G + 16 * (2 * ts + qp)
            for i in range(4): a("v_cvt_pk_bf16_f32 v%d, v%d, v%d" % (g + i, c + 2 * i, c + 2 * i + 1))
            a("v_permlane32_swap_b32 v%d, v%d" % (g, g + 2))
            a("v_permlane32_swap_b32 v%d, v%d" % (g + 1, g + 3))
            for i in range(4):
                a("v_lshlrev_b32 v%d, 16, v%d" % (g + 4 + 2 * i, g + i))
                a("v_and_b32 v%d, 0xffff0000, v%d" % (g + 5 + 2 * i, g + i))
            for i in range(8): a("v_add_f32 v%d, v%d, v%d" % (g + 4 + i, g + 4 + i, vBV + ts))
            for i in range(4): a("v_cvt_pk_bf16_f32 v%d, v%d, v%d" % (g + i, g + 4 + 2 * i, g + 5 + 2 * i))
            z = Z1R + 8 * ts + 4 * qp
            for i in range(4):
                a("v_lshlrev_b32 v%d, 16, v%d" % (g + 4 + 2 * i, g + i))
                a("v_and_b32 v%d, 0xffff0000, v%d" % (g + 5 + 2 * i, g + i))
                a("v_lshlrev_b32 v%d, 16, v%d" % (g + 12, z + i))
                a("v_and_b32 v%d, 0xffff0000, v%d" % (g + 13, z + i))
                a("v_mul_f32 v%d, v%d, v%d" % (g + 4 + 2 * i, g + 4 + 2 * i, g + 12))
                a("v_mul_f32 v%d, v%d, v%d" % (g + 5 + 2 * i, g + 5 + 2 * i, g + 13))
            for i in range(4): a("v_cvt_pk_bf16_f32 v%d, v%d, v%d" % (g + i, g + 4 + 2 * i, g + 5 + 2 * i))
            a("buffer_store_dwordx4 v[%d:%d], v%d, s[%d:%d], s50 offen offset:%d" % (g, g + 3, vZO + ts, sWS, sWS + 3, qp * 32))
    stamp(a, 3)
    if STAMPS:
        a("s_waitcnt vmcnt(0)")
        stamp(a, 4)
    stamp_flush(a, 1, sWAVE, sWS)
    a("s_endpgm")
    a.label("K2_loader")
    a.auto(False)
    a("s_sub_u32 s%d, s%d, 4" % (sWAVE, sWAVE))
    dma_tr_voff(a, 1, 1792, 10, 11)
    a("s_mul_i32 s48, s%d, %d" % (sWAVE, 16 * 1792))
    a("s_lshl_b32 s49, s%d, 7" % sFT)
    a("s_add_u32 s48, s48, s49")
    a("s_add_u32 s48, s48, %d" % WS_Z2)
    a("v_add_u32 v1, s48, v1")
    a("v_add_u32 v2, %d, v1" % (8 * 1792))
    dma_kc_voff(a, 3, 4096, 0, 10, 11)
    dma_kc_voff(a, 4, 4096, 1, 10, 11)
    a("s_lshl_b32 s48, s%d, 7" % sTT)
    a("s_lshl_b32 s49, s%d, 5" % sWAVE)
    a("s_add_u32 s48, s48, s49")
    a("s_lshl_b32 s48, s48, 12")
    a("v_add_u32 v3, s48, v3")
    a("s_add_u32 s48, s48, %d" % (8 * 4096))
    a("v_add_u32 v4, s48, v4")
    a("v_add_u32 v5, %d, v3" % (16 * 4096))
    a("v_add_u32 v6, %d, v4" % (16 * 4096))
    a("s_lshl_b32 s50, s%d, 11" % sWAVE)
    a("s_lshl_b32 s51, s%d, 12" % sWAVE)
    a("s_add_u32 s51, s51, 8192")
    a("s_mov_b32 s52, s%d" % sROT)
    def issue(slot):
        a("s_and_b32 s53, s52, 31")
        a("s_mul_i32 s54, s53, %d" % (64 * 1792))
        a("s_lshl_b32 s55, s53, 7")
        a("s_add_u32 s52, s52, 1")
        for i in range(2):
            a("s_add_u32 m0, s50, %d" % (slot * STG + i * 1024))
            a("buffer_load_dwordx4 v%d, s[%d:%d], s54 offen lds" % (1 + i, sWS, sWS + 3))
        for i in range(4):
            a("s_add_u32 m0, s51, %d" % (slot * STG + i * 1024))
            a("buffer_load_dwordx4 v%d, s[%d:%d], s55 offen lds" % (3 + i, sWSP, sWSP + 3))
    for k in range(3): issue(k)
    a("s_waitcnt vmcnt(12)")
    a("s_barrier")
    issue(3)
    a("s_mov_b32 s56, 0")
    a.label("K2_lloop")
    for u in range(4):
        a("s_waitcnt vmcnt(12)")
        a("s_barrier")
        issue(u % 4)
    a("s_add_u32 s56, s56, 1")
    a("s_cmp_lt_u32 s56, 7")
    a("s_cbranch_scc1 K2_lloop")
    for n in (12, 6, 0):
        a("s_waitcnt vmcnt(%d)" % n)
        a("s_barrier")
    a("s_endpgm")

    a.label("K2_fft")
    a.auto(True)
    build_fft(a)
    a.label("K2_end")
    a("s_endpgm")
    a.label("K2_codeend")
    return kernel_begin(name) + a.text()

def build_fft(a):
    sCOL, sRE, sIM = 40, 41, 42
    a("s_sub_u32 s%d, s2, 224" % sCOL)
    a("s_lshl_b32 s%d, s%d, 3" % (sCOL, sCOL))
    a("s_add_u32 s%d, s%d, s%d" % (sCOL, sCOL, sWAVE))
    a("v_lshlrev_b32 v1, 4, v0")
    a("s_lshl_b32 s48, s%d, 10" % sWAVE)
    a("s_add_u32 s49, s48, %d" % TAB_FFT)
    a("s_lshl_b32 s%d, s%d, 1" % (sRE, sCOL))
    a("s_add_u32 s%d, s%d, 1" % (sIM, sRE))
    a("s_cmp_eq_u32 s%d, 224" % sCOL)
    a("s_cselect_b32 s%d, 1, s%d" % (sRE, sRE))
    a("s_cselect_b32 s%d, 4000, s%d" % (sIM, sIM))
    a("s_cmp_eq_u32 s%d, 0" % sCOL)
    a("s_cselect_b32 s%d, 4000, s%d" % (sIM, sIM))
    a("s_cmp_gt_u32 s%d, 224" % sCOL)
    a("s_cselect_b32 s%d, 4000, s%d" % (sIM, sIM))
    a("s_cselect_b32 s%d, 4000, s%d" % (sRE, sRE))
    a("s_mul_i32 s%d, s%d, %d" % (sRE, sRE, YSTR))
    a("s_mul_i32 s%d, s%d, %d" % (sIM, sIM, YSTR))
    a("s_lshl_b32 s50, s%d, 13" % sWAVE)
    a("s_add_u32 s50, s50, %d" % L_COL)
    a("s_add_u32 s51, s%d, %d" % (sRE, WS_YT))
    a("s_add_u32 s52, s%d, %d" % (sIM, WS_YT))
    a("s_mov_b32 m0, s50")
    for i in range(4): a("buffer_load_dwordx4 v1, s[%d:%d], s51 offen offset:%d lds" % (sWS, sWS + 3, i * 1024))
    a("s_add_u32 m0, s50, 4096")
    for i in range(4): a("buffer_load_dwordx4 v1, s[%d:%d], s52 offen offset:%d lds" % (sWS, sWS + 3, i * 1024))
    for i in range(8):
        if i == 7:
            a("s_cmp_ge_u32 s%d, 6" % sWAVE)
            a("s_cbranch_scc1 K2_fskip")
        a("s_add_u32 m0, s48, %d" % (L_FC + i * 8192))
        a("buffer_load_dwordx4 v1, s[%d:%d], s49 offen lds" % (sTAB, sTAB + 3))
        a("s_add_u32 s49, s49, 8192")
    a.label("K2_fskip")
    WR = 200
    a("s_min_u32 s53, s%d, 224" % sCOL)
    a("s_lshl_b32 s53, s53, 13")
    a("s_add_u32 s53, s53, %d" % WS_WT)
    a("s_add_u32 s54, s53, 4096")
    a("s_mov_b32 s55, %d" % WS_WMAX)
    a("buffer_load_dwordx4 v[4:7], v1, s[%d:%d], s55 offen" % (sWS, sWS + 3))
    for i in range(8):
        a("buffer_load_dwordx4 v[%d:%d], v1, s[%d:%d], s%d offen offset:%d" % (WR + 4 * i, WR + 4 * i + 3, sWS, sWS + 3, 53 + i // 4, (i % 4) * 1024))
    vT = 2
    a("v_lshrrev_b32 v8, 5, v0")
    a("v_bfe_u32 v9, v0, 2, 2")
    a("v_lshl_add_u32 v%d, v8, 2, v9" % vT)
    a("v_lshlrev_b32 v%d, 7, v%d" % (vT, vT))
    a("v_bfe_u32 v9, v0, 4, 1")
    a("v_lshl_add_u32 v%d, v9, 5, v%d" % (vT, vT))
    a("v_and_b32 v9, 3, v0")
    a("v_lshl_add_u32 v%d, v9, 3, v%d" % (vT, vT))
    a("v_add_u32 v%d, s50, v%d" % (vT, vT))
    a("v_max_u32 v4, v4, v5")
    a("v_max3_u32 v4, v4, v6, v7")
    for x in (1, 2, 4, 8, 16):
        a("ds_swizzle_b32 v5, v4 offset:0x%x" % ((x << 10) | 0x1f))
        a("v_max_u32 v4, v4, v5")
    a("v_mov_b32 v5, v4")
    a("v_permlane32_swap_b32 v4, v5")
    a("v_max_u32 v4, v4, v5")
    a("v_lshrrev_b32 v4, 7, v4")
    a("v_max_u32 v4, 1, v4")
    a("v_min_u32 v4, 252, v4")
    a("v_sub_u32 v5, 250, v4")
    a("v_max_i32 v5, 1, v5")
    a("v_lshlrev_b32 v3, 23, v5")
    a("s_mov_b32 s55, %d" % WS_SC)
    a("v_mov_b32 v5, 0")
    a("buffer_store_dword v3, v5, s[%d:%d], s55 offen" % (sWS, sWS + 3))
    a("s_waitcnt vmcnt(9)")
    a("s_barrier")
    stamp(a, 1)
    XR, XI = 16, 32
    AR, AI = 48, 80
    CF = 112
    TW = 160
    TMP = 192
    cfi = [0]
    def cfrag(off):
        b = CF + 4 * (cfi[0] % 12); cfi[0] += 1
        a("ds_read_b128 v[%d:%d], v1 offset:%d" % (b, b + 3, off))
        return b
    def mf(d, x, y, first):
        c = "0" if first else "v[%d:%d]" % (d, d + 15)
        a("v_mfma_f32_32x32x16_f16 v[%d:%d], v[%d:%d], v[%d:%d], %s" % (d, d + 15, x, x + 3, y, y + 3, c))
    F1 = lambda kind, g: L_FC + FFT_F1 + (kind * 2 + g) * 1024
    F2 = lambda kind, t, g: L_FC + FFT_F2 + ((kind * 2 + t) * 4 + g) * 1024
    for part, base in ((0, XR), (1, XI)):
        for mt in range(2):
            for g in range(2):
                b = base + (mt * 2 + g) * 4
                off = part * 4096 + (16 * g) * 128 + mt * 64
                a("ds_read_b64_tr_b16 v[%d:%d], v%d offset:%d" % (b, b + 1, vT, off))
                a("ds_read_b64_tr_b16 v[%d:%d], v%d offset:%d" % (b + 2, b + 3, vT, off + 1024))
    f1 = {(k, g): cfrag(F1(k, g)) for k in range(3) for g in range(2)}
    for mt in range(2):
        for g in range(2):
            xr = XR + (mt * 2 + g) * 4; xi = XI + (mt * 2 + g) * 4
            mf(AR + 16 * mt, xr, f1[(0, g)], g == 0)
            mf(AI + 16 * mt, xi, f1[(0, g)], g == 0)
            mf(AR + 16 * mt, xi, f1[(1, g)], False)
            mf(AI + 16 * mt, xr, f1[(2, g)], False)
    def twiddle(tab, sign):
        def ld(i):
            b = TW + 8 * (i % 4)
            a("ds_read_b128 v[%d:%d], v1 offset:%d" % (b, b + 3, L_FC + tab + i * 2048))
            a("ds_read_b128 v[%d:%d], v1 offset:%d" % (b + 4, b + 7, L_FC + tab + i * 2048 + 1024))
        for i in range(3): ld(i)
        for i in range(8):
            if i + 3 < 8: ld(i + 3)
            c = TW + 8 * (i % 4); s_ = c + 4
            r = AR + 4 * i; m = AI + 4 * i
            for j in range(4): a("v_mul_f32 v%d, v%d, v%d" % (TMP + j, r + j, c + j))
            for j in range(4): a("v_mul_f32 v%d, v%d, v%d" % (TMP + 4 + j, m + j, c + j))
            sg1 = "" if sign < 0 else "-"
            sg2 = "-" if sign < 0 else ""
            for j in range(4): a("v_fma_f32 v%d, %sv%d, v%d, v%d" % (TMP + j, sg1, m + j, s_ + j, TMP + j))
            for j in range(4): a("v_fma_f32 v%d, %sv%d, v%d, v%d" % (TMP + 4 + j, sg2, r + j, s_ + j, TMP + 4 + j))
            a("v_cvt_pk_f16_f32 v%d, v%d, v%d" % (XR + 2 * i, TMP, TMP + 1))
            a("v_cvt_pk_f16_f32 v%d, v%d, v%d" % (XR + 2 * i + 1, TMP + 2, TMP + 3))
            a("v_cvt_pk_f16_f32 v%d, v%d, v%d" % (XI + 2 * i, TMP + 4, TMP + 5))
            a("v_cvt_pk_f16_f32 v%d, v%d, v%d" % (XI + 2 * i + 1, TMP + 6, TMP + 7))
    twiddle(FFT_TWF, -1)
    def stage64(const_is_A, ksin_r, ksin_i):
        for t in range(2):
            fr = {}
            for g in range(2):
                for k in range(3): fr[(k, g)] = cfrag(F2(k, t, g))
            for g in range(4):
                if g + 2 < 4:
                    for k in range(3): fr[(k, g + 2)] = cfrag(F2(k, t, g + 2))
                dr = XR + 4 * g; di = XI + 4 * g
                def mm(d, cst, dat, first):
                    if const_is_A: mf(d, cst, dat, first)
                    else: mf(d, dat, cst, first)
                mm(AR + 16 * t, fr[(0, g)], dr, g == 0)
                mm(AI + 16 * t, fr[(0, g)], di, g == 0)
                mm(AR + 16 * t, fr[(ksin_r, g)], di, False)
                mm(AI + 16 * t, fr[(ksin_i, g)], dr, False)
    stage64(True, 1, 2)
    for i in range(8):
        r = AR + 4 * i; m = AI + 4 * i; w = WR + 4 * i
        c = TW; s_ = TW + 4
        for j in range(4): a("v_lshlrev_b32 v%d, 16, v%d" % (c + j, w + j))
        for j in range(4): a("v_and_b32 v%d, 0xffff0000, v%d" % (s_ + j, w + j))
        for j in range(4): a("v_mul_f32 v%d, v%d, v3" % (c + j, c + j))
        for j in range(4): a("v_mul_f32 v%d, v%d, v3" % (s_ + j, s_ + j))
        for j in range(4): a("v_mul_f32 v%d, v%d, v%d" % (TMP + j, r + j, c + j))
        for j in range(4): a("v_mul_f32 v%d, v%d, v%d" % (TMP + 4 + j, m + j, c + j))
        for j in range(4): a("v_fma_f32 v%d, -v%d, v%d, v%d" % (TMP + j, m + j, s_ + j, TMP + j))
        for j in range(4): a("v_fma_f32 v%d, v%d, v%d, v%d" % (TMP + 4 + j, r + j, s_ + j, TMP + 4 + j))
        a("v_cvt_pk_f16_f32 v%d, v%d, v%d" % (XR + 2 * i, TMP, TMP + 1))
        a("v_cvt_pk_f16_f32 v%d, v%d, v%d" % (XR + 2 * i + 1, TMP + 2, TMP + 3))
        a("v_cvt_pk_f16_f32 v%d, v%d, v%d" % (XI + 2 * i, TMP + 4, TMP + 5))
        a("v_cvt_pk_f16_f32 v%d, v%d, v%d" % (XI + 2 * i + 1, TMP + 6, TMP + 7))
    stage64(False, 2, 1)
    twiddle(FFT_TWI, +1)
    f1 = {(k, g): cfrag(F1(k, g)) for k in range(3) for g in range(2)}
    for nt in range(2):
        for g in range(2):
            xr = XR + (nt * 2 + g) * 4; xi = XI + (nt * 2 + g) * 4
            mf(AR + 16 * nt, xr, f1[(0, g)], g == 0)
            mf(AI + 16 * nt, xi, f1[(0, g)], g == 0)
            mf(AR + 16 * nt, xi, f1[(2, g)], False)
            mf(AI + 16 * nt, xr, f1[(1, g)], False)
    a("s_mov_b32 s56, 0x%08x" % f32bits(A5 * 2))
    a("s_cmp_ge_u32 s%d, %d" % (sIM, 4000 * YSTR))
    a("s_cselect_b32 s56, 0x%08x, s56" % f32bits(A5))
    a("v_and_b32 v8, 31, v0")
    a("v_lshlrev_b32 v8, 7, v8")
    a("v_lshrrev_b32 v9, 5, v0")
    a("v_lshl_add_u32 v8, v9, 4, v8")
    a("s_add_u32 s51, s%d, %d" % (sRE, WS_ZT))
    a("s_add_u32 s52, s%d, %d" % (sIM, WS_ZT))
    for part, acc, sreg in ((0, AR, 51), (1, AI, 52)):
        for nt in range(2):
            for qp in range(2):
                c = acc + 16 * nt + 8 * qp
                o = XR + 16 * part + 8 * nt + 4 * qp
                for j in range(8): a("v_mul_f32 v%d, s56, v%d" % (c + j, c + j))
                for j in range(4): a("v_cvt_pk_f16_f32 v%d, v%d, v%d" % (o + j, c + 2 * j, c + 2 * j + 1))
                a("v_permlane32_swap_b32 v%d, v%d" % (o, o + 2))
                a("v_permlane32_swap_b32 v%d, v%d" % (o + 1, o + 3))
                a("buffer_store_dwordx4 v[%d:%d], v8, s[%d:%d], s%d offen offset:%d" % (o, o + 3, sWS, sWS + 3, sreg, nt * 64 + qp * 32))
    stamp(a, 3)
    if STAMPS:
        a("s_waitcnt vmcnt(0)")
        stamp(a, 4)
    stamp_flush(a, 1, sWAVE, sWS)
```

```python
from common2 import *
import k2 as K2
import k1
from k2 import tr_base, kc_bases, dma_tr_voff, dma_kc_voff

L_W = 0
L_CS = 57344
L_MR = 57856
L_LN = 59904
L_FLAG = 60928
L_T1 = 65536
L_RA = 65536
L_X = 98304
L_RB = 98304
STG3 = 16384
MK_LDS = 163840

GC0 = -2.0 * np.sqrt(2.0 / np.pi) * np.log2(np.e)
GC1 = GC0 * 0.044715

sX, sWIN, sWS, sTAB, sDBG, sWSP, sB, sWO, sOUT = 16, 20, 24, 28, 32, 68, 72, 76, 80
sWAVE, sCG, sRB, sROT2 = 36, 37, 38, 39
sKC = 40
sDT, sST, sR3a, sR3b = 92, 93, 94, 95
sTO = 96
SC = "sc1"
SCL = os.environ.get("SCL", "sc1")
NPRE = int(os.environ.get("NPRE", "4"))
SEG = int(os.environ.get("SEG", "16"))
NL2 = int(os.environ.get("NL2", "3"))
PSLEEP = int(os.environ.get("PSLEEP", "16"))
Z1PRE = int(os.environ.get("Z1PRE", "3"))
LGF = int(np.log2(FSTR))
TIMEOUT = 500000

P3C = {0: 9, 1: 10, 2: 11, 3: 0, 4: 12, 5: 13, 6: 1,
       7: 14, 8: 15, 9: 2, 10: 3, 11: 16, 12: 17, 13: 9, 14: 10, 15: 11, 16: 0, 17: 12, 18: 13, 19: 1, 20: 14}
P3C_SCHED = {-3: [0, 1, 2], -2: [3, 4, 5], -1: [6, 7, 8], 0: [9, 10], 1: [11, 12], 2: [13], 3: [14], 4: [15], 5: [16], 6: [17], 7: [18], 8: [19], 9: [20]}
_dr = [8, 4, 18, 19, 5, 6]
P3D = {0: 4, 1: 5, 2: 6, 3: 8, 4: 4, 5: 5, 6: 6}
for _k in range(7, 21): P3D[_k] = _dr[(_k - 7) % 6]
P3D_SCHED = {-1: [0, 1, 2, 3], 2: [4], 3: [5], 4: [6], 6: [7, 8, 9, 10], 7: [11], 8: [12]}
for _j in range(9, 17): P3D_SCHED[_j] = [_j + 4]
def _check_p3():
    free = {4: -9, 5: -9, 6: -9, 8: -6, 9: -5, 10: -4, 11: -3, 0: -2, 1: -1, 2: 0, 3: 0, 12: -2, 13: -2, 14: -1, 15: -1, 16: 0, 17: 0, 18: 0, 19: 0}
    ev = sorted([(t, "C", k) for t, L in P3C_SCHED.items() for k in L] + [(t, "D", k) for t, L in P3D_SCHED.items() for k in L])
    seen = set()
    for t, ty, k in ev:
        sl = (P3C if ty == "C" else P3D)[k]
        assert free[sl] <= t, (t, ty, k, sl, free[sl])
        assert t < k, (t, ty, k)
        free[sl] = k + 2
        seen.add((ty, k))
    assert len(seen) == 42
_check_p3()
def a_slot_addr(s): return (L_RA + 8192 * s) if s < 4 else 8192 * (s - 4)

def spin_check(a, label_retry, name, slp=4):
    a("s_cbranch_vccz %s_ok" % name)
    a("s_sub_u32 s%d, s%d, 1" % (sTO, sTO))
    a("s_cmp_eq_u32 s%d, 0" % sTO)
    a("s_cbranch_scc1 MK_end")
    a("s_sleep %d" % slp)
    a("s_branch %s" % label_retry)
    a.label("%s_ok" % name)

def gelu_pk(a, acc, csoff, vcsa, PR, outregs, T):
    CS = [T, T + 4]; X = T + 8; P = T + 12; E = T + 16
    groups = [(st, q) for st in range(2) for q in range(4)]
    def pr(i): return "v[%d:%d]" % (PR + 2 * i, PR + 2 * i + 1)
    def p2(b): return "v[%d:%d]" % (b, b + 1)
    def ldcs(i):
        st, q = groups[i]
        a("ds_read_b128 v[%d:%d], v%d offset:%d" % (CS[i % 2], CS[i % 2] + 3, vcsa, csoff + (32 * st + 8 * q) * 4))
    ldcs(0); ldcs(1)
    for gi, (st, q) in enumerate(groups):
        c = CS[gi % 2]; A = acc + 16 * st + 4 * q
        for i in (0, 2): a("v_pk_mul_f32 %s, %s, %s" % (p2(X + i), pr(0), p2(c + i)))
        if gi + 2 < 8: ldcs(gi + 2)
        for i in (0, 2): a("v_pk_fma_f32 %s, %s, %s, %s" % (p2(X + i), p2(A + i), pr(1), p2(X + i)))
        for i in (0, 2): a("v_pk_mul_f32 %s, %s, %s" % (p2(P + i), p2(X + i), p2(X + i)))
        for i in (0, 2): a("v_pk_fma_f32 %s, %s, %s, %s" % (p2(P + i), p2(P + i), pr(3), pr(2)))
        for i in (0, 2): a("v_pk_mul_f32 %s, %s, %s" % (p2(P + i), p2(P + i), p2(X + i)))
        for i in range(4): a("v_exp_f32 v%d, v%d" % (E + i, P + i))
        for i in (0, 2): a("v_pk_add_f32 %s, %s, %s" % (p2(E + i), p2(E + i), pr(4)))
        for i in range(4): a("v_rcp_f32 v%d, v%d" % (E + i, E + i))
        for i in (0, 2): a("v_pk_mul_f32 %s, %s, %s" % (p2(X + i), p2(X + i), p2(E + i)))
        a("v_cvt_pk_bf16_f32 v%d, v%d, v%d" % (outregs[2 * gi], X, X + 1))
        a("v_cvt_pk_bf16_f32 v%d, v%d, v%d" % (outregs[2 * gi + 1], X + 2, X + 3))

def store64(a, A, B, vaddr0, vaddr1, srdb, sreg, off, flags=SC):
    for b4 in (A, B):
        a("v_permlane32_swap_b32 v%d, v%d" % (b4, b4 + 2))
        a("v_permlane32_swap_b32 v%d, v%d" % (b4 + 1, b4 + 3))
    for i in range(4): a("v_permlane16_swap_b32 v%d, v%d" % (A + i, B + i))
    a("buffer_store_dwordx4 v[%d:%d], v%d, s[%d:%d], %s offen offset:%d %s" % (A, A + 3, vaddr0, srdb, srdb + 3, sreg, off, flags))
    a("buffer_store_dwordx4 v[%d:%d], v%d, s[%d:%d], %s offen offset:%d %s" % (B, B + 3, vaddr1, srdb, srdb + 3, sreg, off, flags))

def seg_off(a, dst, t):
    a("v_bfe_u32 v%d, v0, 4, 1" % dst)
    a("v_lshlrev_b32 v%d, 5, v%d" % (dst, dst))
    a("v_lshrrev_b32 v%d, 5, v0" % t)
    a("v_lshl_add_u32 v%d, v%d, 4, v%d" % (dst, t, dst))

def cstamp(a, sreg, val, idx):
    lab = a.newlabel("MK_cs")
    a("s_cmp_lg_u32 s%d, %d" % (sreg, val))
    a("s_cbranch_scc1 %s" % lab)
    a("s_memrealtime s[98:99]")
    a("s_waitcnt lgkmcnt(0)")
    a("v_writelane_b32 v255, s98, %d" % idx)
    a.label(lab)

def build_mk(name):
    a = Asm()
    a("s_cmp_ge_u32 s2, 256")
    a("s_cbranch_scc1 MK_end")
    a("s_load_dwordx16 s[48:63], s[0:1], 0")
    a("s_load_dwordx4 s[84:87], s[0:1], 64")
    a("s_load_dwordx2 s[88:89], s[0:1], 80")
    a("v_lshrrev_b32 v1, 6, v0")
    a("v_and_b32 v0, 63, v0")
    a("v_readfirstlane_b32 s%d, v1" % sWAVE)
    a("s_cmp_lg_u32 s%d, 3" % sWAVE)
    a("s_cbranch_scc1 MK_nopf")
    a("s_getpc_b64 s[4:5]")
    a("s_add_u32 s4, s4, %s@rel32@lo+4" % name)
    a("s_addc_u32 s5, s5, %s@rel32@hi+12" % name)
    a("s_and_b32 s5, s5, 0xffff")
    a("s_mov_b32 s6, MK_codeend-%s" % name)
    a("s_mov_b32 s7, 0x20000")
    a("s_lshr_b32 s8, s2, 3")
    a("s_lshl_b32 s8, s8, 10")
    a("s_add_u32 s9, s8, 32768")
    a("v_lshlrev_b32 v1, 4, v0")
    a("s_mov_b32 m0, 61440")
    a("buffer_load_dwordx4 v1, s[4:7], s8 offen lds")
    a("buffer_load_dwordx4 v1, s[4:7], s9 offen lds")
    a.label("MK_nopf")
    a("s_and_b32 s8, s2, 7")
    a("s_lshr_b32 s9, s2, 3")
    divmod7(a, 10, 11, 9)
    a("s_and_b32 s12, s8, 1")
    a("s_lshr_b32 s13, s8, 1")
    a("s_mul_i32 s14, s12, 7")
    a("s_add_u32 s%d, s14, s11" % sCG)
    a("s_lshl_b32 s14, s13, 2")
    a("s_add_u32 s%d, s14, s10" % sRB)
    a("s_lshl_b32 s14, s10, 1")
    a("s_add_u32 s%d, s14, s11" % sR3b)
    a("s_cmp_ge_u32 s%d, 7" % sR3b)
    a("s_cselect_b32 s14, 7, 0")
    a("s_sub_u32 s%d, s%d, s14" % (sKC, sR3b))
    a("s_cmp_ge_u32 s2, 224")
    a("s_cbranch_scc1 MK_common2")
    a("s_cmp_lt_u32 s%d, 4" % sWAVE)
    a("s_cbranch_scc1 MK_common2")
    helper_start(a)
    a.label("MK_common2")
    a("s_getpc_b64 s[28:29]")
    a("s_add_u32 s28, s28, tab0@rel32@lo+4")
    a("s_addc_u32 s29, s29, tab0@rel32@hi+12")
    a("s_and_b32 s29, s29, 0xffff")
    a("s_mov_b32 s30, %d" % TAB_SIZE)
    a("s_mov_b32 s31, 0x20000")
    a("s_mov_b32 s%d, %d" % (sTO, TIMEOUT))
    for j in range(1, 7):
        a("s_add_u32 s%d, s%d, 1" % (sKC + j, sKC + j - 1))
        a("s_cmp_eq_u32 s%d, 7" % (sKC + j))
        a("s_cselect_b32 s%d, 0, s%d" % (sKC + j, sKC + j))
    if SEG == 32:
        a("s_mul_i32 s14, s11, 5")
        a("s_lshl_b32 s15, s10, 3")
    elif SEG == 16:
        a("s_mul_i32 s14, s11, 9")
        a("s_lshr_b32 s14, s14, 2")
        a("s_lshl_b32 s15, s10, 2")
    else:
        a("s_mov_b32 s14, s11")
        a("s_lshl_b32 s15, s10, 1")
    a("s_add_u32 s%d, s14, s15" % sROT2)
    a("s_mov_b32 s%d, s11" % sDT)
    a("s_lshl_b32 s14, s12, 2")
    a("s_lshl_b32 s15, s13, 3")
    a("s_add_u32 s14, s14, s15")
    a("s_add_u32 s%d, s14, s10" % sST)
    a("s_lshl_b32 s14, s11, 1")
    a("s_mul_i32 s15, s10, 3")
    a("s_add_u32 s%d, s14, s15" % sR3a)
    a("s_waitcnt lgkmcnt(0)")
    srd(a, sX, 48, S * D * 2)
    srd(a, sWIN, 56, D * 1792 * 2)
    srd(a, sWS, 88, WS_SIZE)
    srd(a, sDBG, 86, 256)
    srd(a, sWSP, 58, S * S * 2)
    srd(a, sB, 60, S * 2)
    srd(a, sWO, 62, FH * D * 2)
    srd(a, sOUT, 84, S * D * 2)
    stamp(a, 0, s0=98)
    a("s_cmp_ge_u32 s2, 224")
    a("s_cbranch_scc1 MK_side")
    a("s_cmp_lt_u32 s%d, 4" % sWAVE)
    a("s_cbranch_scc1 MK_compute")
    build_helper(a)
    a.label("MK_compute")
    a.auto(True)
    build_compute(a)
    a.label("MK_side")
    a.auto(True)
    build_side(a)
    a.label("MK_end")
    a("s_endpgm")
    a.label("MK_codeend")
    return kernel_begin(name) + a.text()

sHW = 97
sO2, sO4, sO1 = 64, 65, 66
def iss_x(a, j):
    a("s_lshl_b32 s54, s%d, 7" % (sKC + j))
    for i in range(4):
        a("s_add_u32 m0, s%d, %d" % (sO4, L_X + (j % 4) * 16384 + i * 1024))
        a("buffer_load_dwordx4 v%d, s[%d:%d], s54 offen lds" % (1 + i, sX, sX + 3))
    return 4
def iss_w(a, part, j):
    a("s_mul_i32 s54, s%d, %d" % (sKC + j, 64 * 3584))
    if part == 0: a("s_add_u32 s54, s54, 1792")
    for i in range(2):
        a("s_add_u32 m0, s%d, %d" % (sO2, L_W + j * 8192 + i * 1024))
        a("buffer_load_dwordx4 v%d, s[%d:%d], s54 offen lds" % (5 + i, sWIN, sWIN + 3))
    return 2

def helper_start(a):
    a.auto(False)
    a("s_sub_u32 s%d, s%d, 4" % (sHW, sWAVE))
    dma_kc_voff(a, 1, 896, 0, 10, 11)
    dma_kc_voff(a, 2, 896, 1, 10, 11)
    a("s_lshl_b32 s14, s%d, 7" % sRB)
    a("s_lshl_b32 s15, s%d, 5" % sHW)
    a("s_add_u32 s14, s14, s15")
    a("s_mul_i32 s14, s14, 896")
    a("v_add_u32 v1, s14, v1")
    a("s_add_u32 s14, s14, %d" % (8 * 896))
    a("v_add_u32 v2, s14, v2")
    a("v_add_u32 v3, %d, v1" % (16 * 896))
    a("v_add_u32 v4, %d, v2" % (16 * 896))
    dma_tr_voff(a, 5, 3584, 10, 11)
    a("s_mul_i32 s14, s%d, %d" % (sHW, 16 * 3584))
    a("s_lshl_b32 s15, s%d, 7" % sCG)
    a("s_add_u32 s14, s14, s15")
    a("v_add_u32 v5, s14, v5")
    a("v_add_u32 v6, %d, v5" % (8 * 3584))
    a("s_lshl_b32 s%d, s%d, 11" % (sO2, sHW))
    a("s_lshl_b32 s%d, s%d, 12" % (sO4, sHW))
    a("s_lshl_b32 s%d, s%d, 10" % (sO1, sHW))
    a("s_waitcnt lgkmcnt(0)")
    srd(a, sX, 48, S * D * 2)
    srd(a, sWIN, 56, D * 1792 * 2)
    iss_x(a, 0); iss_w(a, 0, 0)

def build_helper(a):
    a.auto(False)
    a("s_mov_b32 s%d, s%d" % (sWAVE, sHW))
    a("s_mov_b32 s50, s%d" % sO2)
    def iss_t(j):
        a("s_lshl_b32 s54, s%d, 12" % (sKC + j))
        a("s_add_u32 s54, s54, s53")
        a("s_add_u32 m0, s%d, %d" % (sO1, L_T1 + j * 4096))
        a("buffer_load_dwordx4 v7, s[%d:%d], s54 offen lds" % (sTAB, sTAB + 3))
        return 1
    q = [(("c", 0), 6)]
    q.append((("c", 1), iss_x(a, 1) + iss_w(a, 0, 1)))
    a("v_lshlrev_b32 v7, 4, v0")
    a("s_mul_i32 s53, s%d, 28672" % sCG)
    a("s_add_u32 s53, s53, s%d" % sO1)
    a("v_lshlrev_b32 v10, 3, v0")
    a("v_mov_b32 v12, 0\nv_mov_b32 v13, 0")
    a("ds_write_b64 v10, v[12:13] offset:%d" % L_CS)
    for i in range(4): a("ds_write_b64 v12, v[12:13] offset:%d" % (L_FLAG + 8 * i))
    tr_base(a, 16, 10, 11)
    a("s_and_b32 s8, s%d, 1" % sWAVE)
    a("s_lshl_b32 s8, s8, 6")
    a("v_xor_b32 v17, s8, v16")
    a("s_lshr_b32 s8, s%d, 1" % sWAVE)
    a("s_lshl_b32 s8, s8, 12")
    a("v_add_u32 v16, s8, v17")
    a("v_mov_b32 v18, 0\nv_mov_b32 v19, 0")
    WB = 40
    def wait_for(tag):
        idx = [i for i, (t, c) in enumerate(q) if t == tag][0]
        a("s_waitcnt vmcnt(%d)" % min(63, sum(c for t, c in q[idx + 1:])))
    def cs_reads(j, va=16, ne=2, wb=WB):
        for e in range(ne):
            off = L_W + (64 * j + 16 * e) * 128
            a("ds_read_b64_tr_b16 v[%d:%d], v%d offset:%d" % (wb + 4 * e, wb + 4 * e + 1, va, off))
            a("ds_read_b64_tr_b16 v[%d:%d], v%d offset:%d" % (wb + 4 * e + 2, wb + 4 * e + 3, va, off + 512))
    def cs_acc(n, wb=WB):
        for i in range(n):
            a("v_lshlrev_b32 v20, 16, v%d" % (wb + i))
            a("v_and_b32 v21, 0xffff0000, v%d" % (wb + i))
            a("v_add_f32 v18, v18, v20")
            a("v_add_f32 v19, v19, v21")
    def cs_finish(part):
        a("v_add_f32 v19, v18, v19")
        half_sum(a, 19, 21)
        a("v_and_b32 v21, 31, v0")
        a("v_lshlrev_b32 v21, 2, v21")
        a("s_and_b32 s8, s%d, 1" % sWAVE)
        a("s_lshl_b32 s8, s8, 7")
        a("v_add_u32 v21, s8, v21")
        a("s_mov_b32 exec_hi, 0")
        a("ds_add_f32 v21, v19 offset:%d" % (L_CS + 256 * part))
        a("s_mov_b32 exec_hi, -1")
    a("s_waitcnt lgkmcnt(0)")
    for j in range(7):
        if STAMPS == 2: stamp(a, 2 * j + 2, s0=98)
        wait_for(("c", j))
        if STAMPS == 2: stamp(a, 2 * j + 3, s0=98)
        a("s_barrier")
        if j == 0: stamp(a, 1, s0=98)
        cs_reads(j)
        if j + 2 < 7:
            q.append((("c", j + 2), iss_x(a, j + 2) + iss_w(a, 0, j + 2)))
        if j == 5: q.append((("t", 0), sum(iss_t(t) for t in range(7))))
        a("s_waitcnt lgkmcnt(0)")
        cs_acc(8)
        if j == 6: cs_finish(0)
    a("v_mov_b32 v34, v5\nv_mov_b32 v35, v6")
    dma_tr_voff(a, 1, 1792, 10, 11)
    a("s_mul_i32 s8, s%d, %d" % (sWAVE, 16 * 1792))
    a("s_lshl_b32 s9, s%d, 7" % sCG)
    a("s_add_u32 s8, s8, s9")
    a("s_add_u32 s8, s8, %d" % WS_Z2)
    a("v_add_u32 v1, s8, v1")
    a("v_add_u32 v2, %d, v1" % (8 * 1792))
    dma_kc_voff(a, 3, 4096, 0, 10, 11)
    dma_kc_voff(a, 4, 4096, 1, 10, 11)
    a("s_lshl_b32 s8, s%d, 7" % sRB)
    a("s_lshl_b32 s9, s%d, 5" % sWAVE)
    a("s_add_u32 s8, s8, s9")
    a("s_lshl_b32 s8, s8, 12")
    a("v_add_u32 v3, s8, v3")
    a("s_add_u32 s8, s8, %d" % (8 * 4096))
    a("v_add_u32 v4, s8, v4")
    a("v_add_u32 v5, %d, v3" % (16 * 4096))
    a("v_add_u32 v6, %d, v4" % (16 * 4096))
    def kb2(sk):
        a("s_add_u32 s53, %s, s%d" % (sk, sROT2))
        a("s_and_b32 s53, s53, %d" % (SEG - 1))
        if SEG < 32:
            a("s_and_b32 s58, %s, %d" % (sk, 32 - SEG))
            a("s_or_b32 s53, s53, s58")
    def issA(slot, sk):
        kb2(sk)
        a("s_mul_i32 s54, s53, %d" % (64 * 1792))
        for i in range(2):
            a("s_add_u32 m0, s%d, %d" % (sO2, a_slot_addr(slot) + i * 1024))
            a("buffer_load_dwordx4 v%d, s[%d:%d], s54 offen %s lds" % (1 + i, sWS, sWS + 3, SCL))
    def issB(slot, sk, vb=3, ldsadj=0, dummy=False):
        kb2(sk)
        a("s_lshl_b32 s55, s53, 7")
        for i in range(4):
            if dummy: a("s_mov_b32 m0, 61440")
            else: a("s_add_u32 m0, s%d, %d" % (sO4, L_RB + slot * 16384 + i * 1024 + ldsadj))
            a("buffer_load_dwordx4 v%d, s[%d:%d], s55 offen lds" % (vb + i, sWSP, sWSP + 3))
    a("s_waitcnt vmcnt(0) lgkmcnt(0)")
    a("s_barrier")
    a("s_cmp_lt_u32 s%d, 2" % sWAVE)
    a("s_cbranch_scc1 MK_poller")
    a("v_subrev_u32 v36, %d, v34" % (32 * 3584))
    a("v_subrev_u32 v37, %d, v35" % (32 * 3584))
    for t in range(7):
        a("s_mul_i32 s54, s%d, %d" % (sKC + t, 64 * 3584))
        for i, (v, adj) in enumerate(((34, 0), (35, 1024), (36, -4096), (37, -3072))):
            a("s_add_u32 m0, s%d, %d" % (sO2, L_W + t * 8192 + adj))
            a("buffer_load_dwordx4 v%d, s[%d:%d], s54 offen lds" % (v, sWIN, sWIN + 3))
    for i in range(4): a("v_subrev_u32 v%d, %d, v%d" % (32 + i, 64 * 4096, 3 + i))
    for k in range(4):
        a("s_mov_b32 s56, %d" % k)
        issB(k, "s56"); issB(k, "s56", 32, -8192)
        if k == 0:
            a("s_waitcnt vmcnt(8)")
            a("s_lshl_b32 s9, s%d, 2" % sWAVE)
            a("v_mov_b32 v21, s9")
            a("v_mov_b32 v9, 1")
            a("ds_write_b32 v21, v9 offset:%d" % (L_FLAG + 8))
    for k in range(NL2):
        a("s_mov_b32 s56, %d" % (SEG % 32 + k + (4 if SEG == 32 else 0)))
        issB(0, "s56", dummy=True); issB(0, "s56", 32, dummy=True)
    a("v_mov_b32 v8, 0")
    a.label("MK_bw1")
    a("ds_read_b64 v[10:11], v8 offset:%d" % (L_FLAG + 16))
    a("s_waitcnt lgkmcnt(0)")
    a("v_and_b32 v10, v10, v11")
    a("v_cmp_ne_u32 vcc, 1, v10")
    spin_check(a, "MK_bw1", "MK_bw1", 1)
    a("v_mov_b32 v18, 0\nv_mov_b32 v19, 0")
    cs_reads(0, 17, 4, 40)
    for j in range(7):
        if j + 1 < 7:
            cs_reads(j + 1, 17, 4, 40 + 16 * ((j + 1) % 2))
            a("s_waitcnt lgkmcnt(8)")
        else: a("s_waitcnt lgkmcnt(0)")
        cs_acc(16, 40 + 16 * (j % 2))
    cs_finish(1)
    a("s_branch MK_hjoin")
    a.label("MK_poller")
    hs_poll(a, "MK_pollf", 8, 9)
    stamp(a, 2, s0=98)
    a("v_lshlrev_b32 v8, 3, v0")
    a("s_mul_i32 s8, s%d, 14336" % sRB)
    a("s_lshl_b32 s9, s%d, 9" % sWAVE)
    a("s_add_u32 s8, s8, s9")
    a("s_add_u32 s8, s8, %d" % WS_ST)
    for i in range(1, 4): a("s_add_u32 s%d, s8, %d" % (8 + i, 4096 * i))
    a("s_sleep %d" % PSLEEP)
    a.label("MK_polls")
    for p in range(14):
        a("buffer_load_dwordx2 v[%d:%d], v8, s[%d:%d], s%d offen offset:%d %s" % (48 + 2 * p, 49 + 2 * p, sWS, sWS + 3, 8 + p // 4, (p % 4) * 1024, SC))
    a("s_waitcnt vmcnt(0)")
    a("v_or3_b32 v9, v48, v49, v50")
    for p in range(51, 75, 2): a("v_or3_b32 v9, v9, v%d, v%d" % (p, p + 1))
    a("v_or_b32 v9, v9, v75")
    a("v_and_b32 v9, 1, v9")
    a("v_cmp_ne_u32 vcc, 0, v9")
    spin_check(a, "MK_polls", "MK_polls", 1)
    for p in range(0, 14, 2): a("v_pk_add_f32 v[%d:%d], v[%d:%d], v[%d:%d]" % (48 + 2 * p, 49 + 2 * p, 48 + 2 * p, 49 + 2 * p, 50 + 2 * p, 51 + 2 * p))
    for p in (0, 4, 8): a("v_pk_add_f32 v[%d:%d], v[%d:%d], v[%d:%d]" % (48 + 2 * p, 49 + 2 * p, 48 + 2 * p, 49 + 2 * p, 52 + 2 * p, 53 + 2 * p))
    a("v_pk_add_f32 v[48:49], v[48:49], v[56:57]")
    a("v_pk_add_f32 v[64:65], v[64:65], v[72:73]")
    a("v_pk_add_f32 v[48:49], v[48:49], v[64:65]")
    ln_finish(a, 48, 49, 896, 28, 29, 9, 10)
    a("v_mul_f32 v28, v28, v29")
    a("v_sub_f32 v28, 0, v28")
    a("s_lshl_b32 s9, s%d, 9" % sWAVE)
    a("v_add_u32 v21, s9, v8")
    a("ds_write_b64 v21, v[28:29] offset:%d" % L_LN)
    a("s_lshl_b32 s9, s%d, 2" % sWAVE)
    a("v_mov_b32 v21, s9")
    a("v_mov_b32 v9, 1")
    a("ds_write_b32 v21, v9 offset:%d" % (L_FLAG + 4))
    stamp(a, 3, s0=98)
    a("s_cmp_lg_u32 s%d, 0" % sWAVE)
    a("s_cbranch_scc1 MK_hjoin")
    a("v_lshlrev_b32 v8, %d, v0" % LGF)
    a("s_lshl_b32 s54, s%d, %d" % (sCG, 6 + LGF))
    a("s_add_u32 s54, s54, %d" % WS_FA)
    a("s_sleep %d" % PSLEEP)
    a.label("MK_pollA")
    a("buffer_load_dword v9, v8, s[%d:%d], s54 offen %s" % (sWS, sWS + 3, SC))
    a("s_waitcnt vmcnt(0)")
    a("v_cmp_ne_u32 vcc, 1, v9")
    spin_check(a, "MK_pollA", "MK_pollA", 1)
    a.label("MK_hjoin")
    a("s_waitcnt lgkmcnt(0)")
    a("s_barrier")
    a.label("MK_goA")
    stamp(a, 4, s0=98)
    q = []
    def IA(k):
        a("s_mov_b32 s56, %d" % k); issA(k % 8, "s56"); q.append((("A", k), 2))
    def IB(k):
        a("s_mov_b32 s56, %d" % k); issB(k % 4, "s56"); q.append((("B", k), 4))
    def waitq(tags):
        idx = max([i for i, (t, c) in enumerate(q) if t in tags] + [-1])
        if idx >= 0:
            a("s_waitcnt vmcnt(%d)" % min(63, sum(c for t, c in q[idx + 1:])))
            del q[:idx + 1]
    IA(0); IA(1); IA(2)
    sched = {0: [("A", 3), ("A", 4)], 1: [("A", 5), ("A", 6)], 2: [("A", 7), ("B", 4)]}
    for k in range(3, 32):
        L = []
        if k + 2 < 32: L.append(("B", k + 2))
        if k + 5 < 32: L.append(("A", k + 5))
        sched[k] = L
    for k in range(30):
        waitq([("A", k), ("B", k)])
        a("s_barrier")
        for t, kk in sched[k]: (IA if t == "A" else IB)(kk)
    a("s_cmp_lt_u32 s%d, 2" % sWAVE)
    a("s_cbranch_scc1 MK_h3data")
    q_save = list(q)
    a("s_sub_u32 s58, s%d, 2" % sWAVE)
    a("s_lshl_b32 s59, s58, 12")
    dma_tr_voff(a, 24, 896, 10, 11)
    a("s_mul_i32 s8, s58, %d" % (32 * 896))
    a("s_lshl_b32 s9, s%d, 7" % sDT)
    a("s_add_u32 s8, s8, s9")
    a("v_add_u32 v24, s8, v24")
    for i in range(1, 4): a("v_add_u32 v%d, %d, v24" % (24 + i, 8 * 896 * i))
    a("v_lshlrev_b32 v28, 4, v0")
    a("s_mul_i32 s8, s%d, 57344" % sDT)
    a("s_add_u32 s8, s8, s59")
    a("s_add_u32 s8, s8, %d" % TAB_T2)
    a("v_add_u32 v28, s8, v28")
    def kb3(k):
        if k >= 7:
            a("s_add_u32 s53, s%d, %d" % (sR3a, k - 7))
            a("s_cmp_ge_u32 s53, 28\ns_cselect_b32 s54, 28, 0\ns_sub_u32 s53, s53, s54")
            a("s_cmp_ge_u32 s53, 14\ns_cselect_b32 s54, 14, 0\ns_sub_u32 s53, s53, s54")
        else:
            a("s_add_u32 s53, s%d, %d" % (sR3b, k))
            a("s_cmp_ge_u32 s53, 14\ns_cselect_b32 s54, 14, 0\ns_sub_u32 s53, s53, s54")
            a("s_cmp_ge_u32 s53, 7\ns_cselect_b32 s54, 7, 0\ns_sub_u32 s53, s53, s54")
    def IC(k):
        kb3(k)
        base = P3C[k] * 8192
        if k >= 7:
            a("s_mul_i32 s54, s53, %d" % (64 * 896))
            for i in range(4):
                a("s_add_u32 m0, s59, %d" % (base + i * 1024))
                a("buffer_load_dwordx4 v%d, s[%d:%d], s54 offen lds" % (24 + i, sWO, sWO + 3))
        else:
            a("s_lshl_b32 s54, s53, 13")
            a("s_add_u32 m0, s59, %d" % base)
            for i in range(4):
                a("buffer_load_dwordx4 v28, s[%d:%d], s54 offen offset:%d lds" % (sTAB, sTAB + 3, i * 1024))
        q.append((("C", k), 4))
    for k in P3C_SCHED[-3]: IC(k)
    waitq([("A", 30), ("B", 30)]); a("s_barrier")
    for k in P3C_SCHED[-2]: IC(k)
    waitq([("A", 31), ("B", 31)]); a("s_barrier")
    for k in P3C_SCHED[-1]: IC(k)
    for j in range(21):
        waitq([("C", j)]); a("s_barrier")
        for k in P3C_SCHED.get(j, []): IC(k)
    stamp_flush(a, 0, sWAVE, sWS, s0=98, waveadd=4)
    a("s_endpgm")
    a.label("MK_h3data")
    q[:] = q_save
    a("s_lshl_b32 s59, s%d, 12" % sWAVE)
    dma_kc_voff(a, 24, 1792, 0, 10, 11)
    dma_kc_voff(a, 25, 1792, 1, 10, 11)
    a("s_lshl_b32 s8, s%d, 6" % sST)
    a("s_lshl_b32 s9, s%d, 5" % sWAVE)
    a("s_add_u32 s8, s8, s9")
    a("s_mul_i32 s8, s8, 1792")
    a("s_add_u32 s8, s8, %d" % WS_U)
    a("v_add_u32 v24, s8, v24")
    a("s_add_u32 s8, s8, %d" % (8 * 1792))
    a("v_add_u32 v25, s8, v25")
    a("v_add_u32 v26, %d, v24" % (16 * 1792))
    a("v_add_u32 v27, %d, v25" % (16 * 1792))
    dma_tr_voff(a, 28, YSTR, 10, 11)
    a("s_mul_i32 s8, s%d, %d" % (sWAVE, 32 * YSTR))
    a("s_lshl_b32 s9, s%d, 7" % sST)
    a("s_add_u32 s8, s8, s9")
    a("s_add_u32 s8, s8, %d" % WS_ZT)
    a("v_add_u32 v28, s8, v28")
    for i in range(1, 4): a("v_add_u32 v%d, %d, v28" % (28 + i, 8 * YSTR * i))
    def ID(k):
        kb3(k)
        base = P3D[k] * 8192
        if k >= 7: a("s_lshl_b32 s54, s53, 7"); vb = 24
        else: a("s_mul_i32 s54, s53, %d" % (64 * YSTR)); vb = 28
        for i in range(4):
            a("s_add_u32 m0, s59, %d" % (base + i * 1024))
            a("buffer_load_dwordx4 v%d, s[%d:%d], s54 offen %s lds" % (vb + i, sWS, sWS + 3, SC))
        q.append((("D", k), 4))
    waitq([("A", 30), ("B", 30)]); a("s_barrier")
    waitq([("A", 31), ("B", 31)]); a("s_barrier")
    a("v_and_b32 v8, 31, v0")
    a("v_lshlrev_b32 v8, %d, v8" % LGF)
    a("s_mov_b32 s54, %d" % WS_FZ)
    a.label("MK_pollZ")
    a("buffer_load_dword v9, v8, s[%d:%d], s54 offen %s" % (sWS, sWS + 3, SC))
    a("s_waitcnt vmcnt(0)")
    a("v_cmp_ne_u32 vcc, 1, v9")
    spin_check(a, "MK_pollZ", "MK_pollZ", 4)
    stamp(a, 5, s0=98)
    for k in P3D_SCHED[-1]: ID(k)
    for j in range(21):
        waitq([("D", j)]); a("s_barrier")
        if j == 6:
            a("v_lshlrev_b32 v8, %d, v0" % LGF)
            a("s_lshr_b32 s54, s%d, 1" % sST)
            a("s_lshl_b32 s54, s54, %d" % (6 + LGF))
            a("s_add_u32 s54, s54, %d" % WS_FB)
            a("s_and_b32 s55, s%d, 1" % sST)
            a("v_bfe_u32 v10, v0, 1, 1")
            a("v_cmp_eq_u32 s[8:9], s55, v10")
            a("v_cmp_gt_u32 s[10:11], 56, v0")
            a("s_and_b64 s[8:9], s[8:9], s[10:11]")
            a.label("MK_pollB")
            a("buffer_load_dword v9, v8, s[%d:%d], s54 offen %s" % (sWS, sWS + 3, SC))
            a("s_waitcnt vmcnt(0)")
            a("v_cmp_ne_u32 vcc, 1, v9")
            a("s_nop 1")
            a("s_and_b64 vcc, vcc, s[8:9]")
            spin_check(a, "MK_pollB", "MK_pollB", 1)
            stamp(a, 6, s0=98)
        for k in P3D_SCHED.get(j, []): ID(k)
    stamp_flush(a, 0, sWAVE, sWS, s0=98, waveadd=4)
    a("s_endpgm")

def fa_addr(a, sd):
    a("s_lshl_b32 s%d, s%d, 6" % (sd, sCG))
    a("s_lshl_b32 s%d, s%d, 2" % (sd + 1, sRB))
    a("s_add_u32 s%d, s%d, s%d" % (sd, sd, sd + 1))
    a("s_add_u32 s%d, s%d, s%d" % (sd, sd, sWAVE))
    a("s_lshl_b32 s%d, s%d, %d" % (sd, sd, LGF))
    a("s_add_u32 s%d, s%d, %d" % (sd, sd, WS_FA))
def fb_addr(a, sd):
    a("s_lshl_b32 s%d, s%d, 6" % (sd, sRB))
    a("s_lshl_b32 s%d, s%d, 2" % (sd + 1, sCG))
    a("s_add_u32 s%d, s%d, s%d" % (sd, sd, sd + 1))
    a("s_add_u32 s%d, s%d, s%d" % (sd, sd, sWAVE))
    a("s_lshl_b32 s%d, s%d, %d" % (sd, sd, LGF))
    a("s_add_u32 s%d, s%d, %d" % (sd, sd, WS_FB))

def hs_poll(a, name, va, vd, slp=4):
    a("v_and_b32 v%d, 31, v0" % va)
    a("v_lshlrev_b32 v%d, 3, v%d" % (va, va))
    a.label(name)
    a("buffer_load_dword v%d, v%d, s[%d:%d], 0 offen %s" % (vd, va, sDBG, sDBG + 3, SC))
    a("s_waitcnt vmcnt(0)")
    a("v_cmp_ne_u32 vcc, 1, v%d" % vd)
    spin_check(a, name, name, slp)

def build_compute(a):
    XF = 16; ACA = 128; ACB = 160; WF = 192; Z2P = 216; T = 232
    vTR = [1, 2]; vKX = 3
    vSUM, vSQ, vONE = 7, 8, 9
    vSTO, vCSA, vCST, vBV = 10, 11, 12, 13
    vNMR, vR = 252, 253
    PR = WF
    a("s_lshl_b32 s55, s%d, 7" % sRB)
    a("s_lshl_b32 s56, s%d, 5" % sWAVE)
    a("s_add_u32 s55, s55, s56")
    tr_base(a, vTR[0], T, T + 1)
    a("v_xor_b32 v%d, 64, v%d" % (vTR[1], vTR[0]))
    kc_bases(a, vKX, T, T + 1)
    a("s_lshl_b32 s8, s%d, 12" % sWAVE)
    a("s_add_u32 s8, s8, %d" % L_X)
    for e in range(4): a("v_add_u32 v%d, s8, v%d" % (vKX + e, vKX + e))
    a("v_and_b32 v%d, 31, v0" % T)
    a("v_lshlrev_b32 v%d, 2, v%d" % (T + 1, T))
    a("s_lshl_b32 s8, s%d, 7" % sCG)
    a("s_add_u32 s9, s8, %d" % TAB_CST)
    a("buffer_load_dword v%d, v%d, s[%d:%d], s9 offen" % (vCST, T + 1, sTAB, sTAB + 3))
    a("v_add_u32 v%d, s55, v%d" % (T + 1, T))
    a("v_lshlrev_b32 v%d, 1, v%d" % (T + 3, T + 1))
    a("buffer_load_ushort v%d, v%d, s[%d:%d], 0 offen" % (vBV, T + 3, sB, sB + 3))
    a("v_and_b32 v%d, 15, v0" % (T + 1))
    a("v_add_u32 v%d, s55, v%d" % (T + 1, T + 1))
    a("v_mul_u32_u24 v%d, 1792, v%d" % (T + 1, T + 1))
    seg_off(a, 15, T + 2)
    a("v_add3_u32 v%d, v15, v%d, s8" % (vSTO, T + 1))
    a("v_add_u32 v14, %d, v%d" % (16 * 1792, vSTO))
    a("v_lshlrev_b32 v%d, 4, v%d" % (vCSA, T + 2))
    a("v_mov_b32 v%d, 0x3f803f80" % vONE)
    a("v_mov_b32 v%d, 0" % vSUM)
    a("v_mov_b32 v%d, 0" % vSQ)
    def wreads(j, e):
        b = WF + 8 * (e % 3)
        off = L_W + (64 * j + 16 * e) * 128
        for st in range(2):
            a("ds_read_b64_tr_b16 v[%d:%d], v%d offset:%d" % (b + 4 * st, b + 4 * st + 1, vTR[st], off))
            a("ds_read_b64_tr_b16 v[%d:%d], v%d offset:%d" % (b + 4 * st + 2, b + 4 * st + 3, vTR[st], off + 512))
    def wmfma(acc, j, e):
        b = WF + 8 * (e % 3); x = XF + 16 * j + 4 * e
        for st in range(2):
            c = "0" if (j == 0 and e == 0) else "v[%d:%d]" % (acc + 16 * st, acc + 16 * st + 15)
            a("v_mfma_f32_32x32x16_bf16 v[%d:%d], v[%d:%d], v[%d:%d], %s" % (acc + 16 * st, acc + 16 * st + 15, b + 4 * st, b + 4 * st + 3, x, x + 3, c))
    def xstats(j):
        b = XF + 16 * j
        for i in range(16):
            a("v_dot2_f32_bf16 v%d, v%d, v%d, v%d" % (vSUM, b + i, vONE, vSUM))
            a("v_dot2_f32_bf16 v%d, v%d, v%d, v%d" % (vSQ, b + i, b + i, vSQ))
    WB2 = [ACB, WF]
    def p1_reads(j):
        L = []
        for e in range(4):
            x = XF + 16 * j + 4 * e
            L.append("ds_read_b128 v[%d:%d], v%d offset:%d" % (x, x + 3, vKX + e, (j % 4) * 16384))
            b = WB2[j % 2] + 8 * e
            off = L_W + (64 * j + 16 * e) * 128
            for st in range(2):
                L.append("ds_read_b64_tr_b16 v[%d:%d], v%d offset:%d" % (b + 4 * st, b + 4 * st + 1, vTR[st], off))
                L.append("ds_read_b64_tr_b16 v[%d:%d], v%d offset:%d" % (b + 4 * st + 2, b + 4 * st + 3, vTR[st], off + 512))
        return L
    def p1_mfma(j):
        L = []
        for e in range(4):
            b = WB2[j % 2] + 8 * e; x = XF + 16 * j + 4 * e
            for st in range(2):
                c = "0" if (j == 0 and e == 0) else "v[%d:%d]" % (ACA + 16 * st, ACA + 16 * st + 15)
                L.append("v_mfma_f32_32x32x16_bf16 v[%d:%d], v[%d:%d], v[%d:%d], %s" % (ACA + 16 * st, ACA + 16 * st + 15, b + 4 * st, b + 4 * st + 3, x, x + 3, c))
        return L
    for j in range(8):
        if j < 7:
            if STAMPS == 2: stamp(a, 2 * j + 2, s0=98)
            a("s_barrier")
            if STAMPS == 2: stamp(a, 2 * j + 3, s0=98)
            if j == 0: stamp(a, 1, s0=98)
        R = p1_reads(j) if j < 7 else []
        M = p1_mfma(j - 1) if j > 0 else []
        if not M:
            for r in R: a(r)
        else:
            for e in range(4):
                a(M[2 * e])
                for r in R[5 * e:5 * e + 3]: a(r)
                a(M[2 * e + 1])
                for r in R[5 * e + 3:5 * e + 5]: a(r)
            xstats(j - 1)
    stamp(a, 2, s0=98)
    half_sum(a, vSUM, T); half_sum(a, vSQ, T + 1)
    ln_finish(a, vSUM, vSQ, 448, T + 2, vR, T, T + 1)
    a("v_sub_f32 v%d, 0, v%d" % (T + 2, T + 2))
    a("v_mul_f32 v%d, v%d, v%d" % (vNMR, T + 2, vR))
    a("v_mul_f32 v%d, 0x%08x, v%d" % (T + 3, f32bits(A1), vR))
    a("v_and_b32 v%d, 31, v0" % T)
    a("v_lshlrev_b32 v%d, 2, v%d" % (T, T))
    a("s_lshl_b32 s8, s%d, 9" % sWAVE)
    a("v_add_u32 v%d, s8, v%d" % (T, T))
    a("ds_write_b32 v%d, v%d offset:%d" % (T, T + 2, L_MR))
    a("ds_write_b32 v%d, v%d offset:%d" % (T, T + 3, L_MR + 128))
    def load_pr():
        a("v_mov_b32 v%d, v%d" % (PR, vNMR))
        a("v_mov_b32 v%d, v%d" % (PR + 1, vNMR))
        a("v_mov_b32 v%d, v%d" % (PR + 2, vR))
        a("v_mov_b32 v%d, v%d" % (PR + 3, vR))
        for i, val in enumerate((GC0, GC1, 1.0)):
            a("v_mov_b32 v%d, 0x%08x" % (PR + 4 + 2 * i, f32bits(val)))
            a("v_mov_b32 v%d, 0x%08x" % (PR + 5 + 2 * i, f32bits(val)))
    load_pr()
    a("v_and_b32 v%d, 31, v0" % (T + 22))
    a("v_lshlrev_b32 v%d, 3, v%d" % (T + 22, T + 22))
    a("buffer_load_dword v%d, v%d, s[%d:%d], 0 offen %s" % (T + 22, T + 22, sDBG, sDBG + 3, SC))
    a("s_barrier")
    gelu_pk(a, ACA, L_CS, vCSA, PR, [Z2P + i for i in range(16)], T)
    a("v_mov_b32 v%d, 0" % vSUM)
    a("v_mov_b32 v%d, 0" % vSQ)
    for i in range(16):
        a("v_dot2_f32_bf16 v%d, v%d, v%d, v%d" % (vSUM, Z2P + i, vONE, vSUM))
        a("v_dot2_f32_bf16 v%d, v%d, v%d, v%d" % (vSQ, Z2P + i, Z2P + i, vSQ))
    half_sum(a, vSUM, T); half_sum(a, vSQ, T + 1)
    a("v_and_b32 v%d, -2, v%d" % (T + 2, vSUM))
    a("v_and_b32 v%d, -2, v%d" % (T + 3, vSQ))
    a("s_mul_i32 s8, s%d, 14" % sRB)
    a("s_add_u32 s8, s8, s%d" % sCG)
    a("s_lshl_b32 s8, s8, 10")
    a("s_lshl_b32 s9, s%d, 8" % sWAVE)
    a("s_add_u32 s8, s8, s9")
    a("s_add_u32 s8, s8, %d" % WS_ST)
    a("v_and_b32 v%d, 31, v0" % T)
    a("v_lshlrev_b32 v%d, 3, v%d" % (T, T))
    a("v_cmp_ne_u32 vcc, 1, v%d" % (T + 22))
    a("s_cbranch_vccz MK_chs_done")
    a.auto(False)
    hs_poll(a, "MK_chs", T + 4, T + 5)
    a.auto(True)
    a.label("MK_chs_done")
    a("buffer_store_dwordx2 v[%d:%d], v%d, s[%d:%d], s8 offen %s" % (T + 2, T + 3, T, sWS, sWS + 3, SC))
    stamp(a, 3, s0=98)
    ACY = ACA
    a("v_lshlrev_b32 v%d, 4, v0" % (T + 4))
    a("v_add_u32 v%d, %d, v%d" % (T + 4, L_T1, T + 4))
    def tread(st):
        b = WF + 4 * (st % 6)
        a("ds_read_b128 v[%d:%d], v%d offset:%d" % (b, b + 3, T + 4, st * 1024))
    for st in range(5): tread(st)
    a("s_lshl_b32 s9, s%d, 9" % sWAVE)
    a("v_add_u32 v%d, s9, v%d" % (T + 1, vCSA))
    NM = ACB; RA = ACB + 16
    for st in range(28):
        b = WF + 4 * (st % 6); x = XF + 4 * st
        c = "0" if st == 0 else "v[%d:%d]" % (ACY, ACY + 15)
        a("v_mfma_f32_32x32x16_bf16 v[%d:%d], v[%d:%d], v[%d:%d], %s" % (ACY, ACY + 15, x, x + 3, b, b + 3, c))
        if st + 5 < 28: tread(st + 5)
        if 23 <= st < 27:
            qq = st - 23
            a("ds_read_b128 v[%d:%d], v%d offset:%d" % (NM + 4 * qq, NM + 4 * qq + 3, T + 1, L_MR + 32 * qq))
            a("ds_read_b128 v[%d:%d], v%d offset:%d" % (RA + 4 * qq, RA + 4 * qq + 3, T + 1, L_MR + 128 + 32 * qq))
    a("v_and_b32 v%d, 15, v0" % (T + 2))
    a("s_lshl_b32 s9, s%d, 5" % sCG)
    a("v_add_u32 v%d, s9, v%d" % (T + 2, T + 2))
    a("v_mul_u32_u24 v%d, %d, v%d" % (T + 2, YSTR, T + 2))
    a("v_add_u32 v%d, v15, v%d" % (T + 2, T + 2))
    a("v_add_u32 v%d, %d, v%d" % (T + 3, 16 * YSTR, T + 2))
    a("s_lshl_b32 s9, s55, 1")
    a("s_add_u32 s9, s9, %d" % WS_YT)
    for r in range(16): a("v_fma_f32 v%d, v%d, v%d, v%d" % (ACY + r, NM + r, vCST, ACY + r))
    for r in range(16): a("v_mul_f32 v%d, v%d, v%d" % (ACY + r, ACY + r, RA + r))
    YP = T + 4
    for r in range(8): a("v_cvt_pk_f16_f32 v%d, v%d, v%d" % (YP + r, ACY + 2 * r, ACY + 2 * r + 1))
    store64(a, YP, YP + 4, T + 2, T + 3, sWS, "s9", 0)
    U = ACA
    def z1chunk(j):
        wreads(j, 0); wreads(j, 1); wreads(j, 2)
        wmfma(ACB, j, 0)
        wreads(j, 3)
        wmfma(ACB, j, 1); wmfma(ACB, j, 2); wmfma(ACB, j, 3)
    for i in range(16):
        a("v_lshlrev_b32 v%d, 16, v%d" % (U + 2 * i, Z2P + i))
        a("v_and_b32 v%d, 0xffff0000, v%d" % (U + 2 * i + 1, Z2P + i))
    a("v_and_b32 v%d, 31, v0" % T)
    a("v_lshlrev_b32 v%d, 3, v%d" % (T, T))
    a("s_lshl_b32 s9, s%d, 8" % sWAVE)
    a("v_add_u32 v%d, s9, v%d" % (T, T))
    a("s_mov_b32 s8, %d" % WS_Z2)
    fa_addr(a, 10)
    a("s_lshr_b32 s9, s%d, 1" % sWAVE)
    a("s_lshl_b32 s9, s9, 2")
    a("v_mov_b32 v%d, s9" % (T + 1))
    a("v_mov_b32 v%d, 0" % (T + 16))
    a("v_mov_b32 v%d, 1" % (T + 17))
    a.auto(False)
    a.label("MK_cw1")
    a("ds_read_b64 v[%d:%d], v%d offset:%d" % (T + 2, T + 3, T + 16, L_FLAG + 16))
    a("s_waitcnt lgkmcnt(0)")
    a("v_and_b32 v%d, v%d, v%d" % (T + 2, T + 2, T + 3))
    a("v_cmp_ne_u32 vcc, 1, v%d" % (T + 2))
    spin_check(a, "MK_cw1", "MK_cw1", 0)
    a.auto(True)
    for j in range(Z1PRE): z1chunk(j)
    stamp(a, 4, s0=98)
    a.auto(False)
    a.label("MK_cwln")
    a("ds_read_b32 v%d, v%d offset:%d" % (T + 2, T + 1, L_FLAG + 4))
    a("s_waitcnt lgkmcnt(0)")
    a("v_cmp_ne_u32 vcc, 1, v%d" % (T + 2))
    spin_check(a, "MK_cwln", "MK_cwln", 0)
    a.auto(True)
    stamp(a, 5, s0=98)
    a("ds_read_b32 v%d, v%d offset:%d" % (T + 12, T, L_LN))
    a("ds_read_b32 v%d, v%d offset:%d" % (T + 13, T, L_LN))
    a("ds_read_b32 v%d, v%d offset:%d" % (T + 14, T, L_LN + 4))
    a("ds_read_b32 v%d, v%d offset:%d" % (T + 15, T, L_LN + 4))
    for st in range(2):
        for i in range(8 * st, 8 * st + 8):
            a("v_pk_fma_f32 v[%d:%d], v[%d:%d], v[%d:%d], v[%d:%d]" % (U + 2 * i, U + 2 * i + 1, U + 2 * i, U + 2 * i + 1, T + 14, T + 15, T + 12, T + 13))
        for i in range(8 * st, 8 * st + 8):
            a("v_cvt_pk_bf16_f32 v%d, v%d, v%d" % (Z2P + i, U + 2 * i, U + 2 * i + 1))
        store64(a, Z2P + 8 * st, Z2P + 8 * st + 4, vSTO, 14, sWS, "s8", st * 64)
    a("s_add_u32 s9, s10, %d" % (WS_FY - WS_FA))
    a("s_waitcnt vmcnt(4)")
    a("buffer_store_dword v%d, v%d, s[%d:%d], s9 offen %s" % (T + 17, T + 16, sWS, sWS + 3, SC))
    stamp(a, 6, s0=98)
    for j in range(Z1PRE, 7): z1chunk(j)
    a("s_waitcnt vmcnt(1)")
    a("buffer_store_dword v%d, v%d, s[%d:%d], s10 offen %s" % (T + 17, T + 16, sWS, sWS + 3, SC))
    stamp(a, 7, s0=98)
    a("s_barrier")
    Z1P = Z2P
    a("v_mov_b32 v%d, 0x%08x" % (WF + 20, f32bits(GC0)))
    a("s_mov_b32 s%d, 0x%08x" % (k1.sC1, f32bits(GC1)))
    g1 = k1.gelu_stream(ACB, L_CS + 256, vCSA, vNMR, vR, [Z1P + i for i in range(16)], WF)
    stamp(a, 8, s0=98)
    a.auto(False)
    ACC = 16; FB = [48, 96]
    vTA = [1, 2]; vTAh = [144, 145]; vKB = 3
    for st in range(2): a("v_add_u32 v%d, %d, v%d" % (vTAh[st], L_RA, vTR[st]))
    def reads_list(k):
        L = []
        buf = k % 2; sa = k % 8
        ta, ao = (vTAh, sa * 8192) if sa < 4 else (vTA, (sa - 4) * 8192)
        for e in range(4):
            b = FB[buf] + 12 * e
            L.append("ds_read_b128 v[%d:%d], v%d offset:%d" % (b + 8, b + 11, vKB + e, (k % 4) * 16384))
            for st in range(2):
                L.append("ds_read_b64_tr_b16 v[%d:%d], v%d offset:%d" % (b + 4 * st, b + 4 * st + 1, ta[st], ao + 16 * e * 128))
                L.append("ds_read_b64_tr_b16 v[%d:%d], v%d offset:%d" % (b + 4 * st + 2, b + 4 * st + 3, ta[st], ao + 16 * e * 128 + 512))
        return L
    def mfma_list(buf):
        L = []
        for e in range(4):
            b = FB[buf] + 12 * e
            for st in range(2):
                c = ACC + 16 * st
                L.append("v_mfma_f32_32x32x16_bf16 v[%d:%d], v[%d:%d], v[%d:%d], v[%d:%d]" % (c, c + 15, b + 4 * st, b + 4 * st + 3, b + 8, b + 11, c, c + 15))
        return L
    def mfmas(buf):
        for m in mfma_list(buf): a(m)
    for r in range(32): a("v_mov_b32 v%d, 0" % (ACC + r))
    a("s_barrier")
    stamp(a, 9, s0=98)
    a.auto(True)
    for r in reads_list(0): a(r)
    gi = 0
    G = g1.items
    for u in range(8):
        a("s_barrier")
        R = reads_list(1 + u); M = mfma_list(u % 2)
        for e in range(4):
            for half in range(2):
                a(M[2 * e + half])
                for r in (R[5 * e:5 * e + 3] if half == 0 else R[5 * e + 3:5 * e + 5]): a(r)
                a.items.extend(G[gi:gi + 5]); gi += 5
    assert gi >= len(G), (gi, len(G))
    a.auto(False)
    a("s_mov_b32 s52, 1")
    a.label("MK_cloop")
    for u in range(8):
        if u == 7:
            a("s_cmp_eq_u32 s52, 3")
            a("s_cbranch_scc1 MK_cdone")
        a("s_barrier")
        R = reads_list(1 + u); M = mfma_list(u % 2)
        for e in range(4):
            a("s_waitcnt lgkmcnt(15)")
            a(M[2 * e])
            for r in R[5 * e:5 * e + 3]: a(r)
            a(M[2 * e + 1])
            for r in R[5 * e + 3:5 * e + 5]: a(r)
    a("s_add_u32 s52, s52, 1")
    a("s_branch MK_cloop")
    a.label("MK_cdone")
    M = mfma_list(1)
    for e in range(4):
        a("s_waitcnt lgkmcnt(%d)" % (15 - 5 * e))
        a(M[2 * e]); a(M[2 * e + 1])
    stamp(a, 10, s0=98)
    a.auto(True)
    a("v_lshlrev_b32 v%d, 16, v%d" % (vBV, vBV))
    a("s_mov_b32 s10, %d" % WS_U)
    G = 48; Zu = 80; P = 112
    for st in range(2):
        for q0 in (0, 2):
            i0 = 8 * st + 2 * q0
            c = ACC + 2 * i0
            for i in range(4): a("v_cvt_pk_bf16_f32 v%d, v%d, v%d" % (P + i0 + i, c + 2 * i, c + 2 * i + 1))
            for i in range(4):
                a("v_lshlrev_b32 v%d, 16, v%d" % (G + 2 * i, P + i0 + i))
                a("v_and_b32 v%d, 0xffff0000, v%d" % (G + 2 * i + 1, P + i0 + i))
            for i in range(8): a("v_add_f32 v%d, v%d, v%d" % (G + i, G + i, vBV))
            for i in range(4): a("v_cvt_pk_bf16_f32 v%d, v%d, v%d" % (P + i0 + i, G + 2 * i, G + 2 * i + 1))
            for i in range(4):
                a("v_lshlrev_b32 v%d, 16, v%d" % (G + 2 * i, P + i0 + i))
                a("v_and_b32 v%d, 0xffff0000, v%d" % (G + 2 * i + 1, P + i0 + i))
                a("v_lshlrev_b32 v%d, 16, v%d" % (Zu + 2 * i, Z1P + i0 + i))
                a("v_and_b32 v%d, 0xffff0000, v%d" % (Zu + 2 * i + 1, Z1P + i0 + i))
            for i in range(4): a("v_pk_mul_f32 v[%d:%d], v[%d:%d], v[%d:%d]" % (G + 2 * i, G + 2 * i + 1, G + 2 * i, G + 2 * i + 1, Zu + 2 * i, Zu + 2 * i + 1))
            for i in range(4): a("v_cvt_pk_bf16_f32 v%d, v%d, v%d" % (P + i0 + i, G + 2 * i, G + 2 * i + 1))
        store64(a, P + 8 * st, P + 8 * st + 4, vSTO, 14, sWS, "s10", st * 64)
    ACG, ACS = 16, 32
    FB3 = [48, 80]
    vTRa, vK3, vFR, vTRb = 1, 2, 6, 7
    XR = 128; vXO = 8; vSC = 9
    fb_addr(a, 8)
    a("s_and_b32 s48, s%d, 1" % sWAVE)
    a("s_lshr_b32 s49, s%d, 1" % sWAVE)
    tr_base(a, vTRa, 140, 141)
    a("s_lshl_b32 s50, s49, 6")
    a("v_xor_b32 v%d, s50, v%d" % (vTRb, vTRa))
    a("s_lshl_b32 s50, s48, 6")
    a("v_xor_b32 v%d, s50, v%d" % (vTRa, vTRa))
    kc_bases(a, vK3, 140, 141)
    a("s_lshl_b32 s50, s49, 12")
    for e in range(4): a("v_add_u32 v%d, s50, v%d" % (vK3 + e, vK3 + e))
    a("v_lshlrev_b32 v%d, 4, v0" % vFR)
    a("s_lshl_b32 s50, s48, 10")
    a("v_add_u32 v%d, s50, v%d" % (vFR, vFR))
    for r in range(1, 8):
        a("v_add_u32 v%d, 65536, v%d" % (150 + r, r))
        a("v_add_u32 v%d, 131072, v%d" % (160 + r, r))
    def ad(r, slot): return (r, r + 150, r + 160)[slot // 8], (slot % 8) * 8192
    a("s_lshl_b32 s50, s%d, 6" % sST)
    a("s_lshl_b32 s51, s49, 5")
    a("s_add_u32 s50, s50, s51")
    a("v_and_b32 v140, 31, v0")
    a("v_add_u32 v140, s50, v140")
    a("v_mul_u32_u24 v140, 896, v140")
    a("v_lshrrev_b32 v141, 5, v0")
    a("v_lshl_add_u32 v%d, v141, 4, v140" % vXO)
    a("s_lshl_b32 s50, s%d, 7" % sDT)
    a("s_lshl_b32 s51, s48, 6")
    a("s_add_u32 s50, s50, s51")
    a("v_add_u32 v%d, s50, v%d" % (vXO, vXO))
    a("v_mov_b32 v140, 0")
    a("v_mov_b32 v141, 1")
    a("s_waitcnt vmcnt(0)")
    a("buffer_store_dword v141, v140, s[%d:%d], s8 offen %s" % (sWS, sWS + 3, SC))
    stamp(a, 11, s0=98)
    for qp in range(2):
        a("buffer_load_dwordx4 v[%d:%d], v%d, s[%d:%d], 0 offen offset:%d" % (XR + 4 * qp, XR + 4 * qp + 3, vXO, sX, sX + 3, qp * 32))
    a.auto(False)
    NST = 21
    def reads3(k):
        buf = k % 2
        for e in range(4):
            b = FB3[buf] + 8 * e
            if k >= 7:
                r, o = ad(vTRa, P3C[k])
                a("ds_read_b64_tr_b16 v[%d:%d], v%d offset:%d" % (b, b + 1, r, o + 16 * e * 128))
                a("ds_read_b64_tr_b16 v[%d:%d], v%d offset:%d" % (b + 2, b + 3, r, o + 16 * e * 128 + 512))
                r, o = ad(vK3 + e, P3D[k])
                a("ds_read_b128 v[%d:%d], v%d offset:%d" % (b + 4, b + 7, r, o))
            else:
                r, o = ad(vFR, P3C[k])
                a("ds_read_b128 v[%d:%d], v%d offset:%d" % (b, b + 3, r, o + e * 2048))
                r, o = ad(vTRb, P3D[k])
                a("ds_read_b64_tr_b16 v[%d:%d], v%d offset:%d" % (b + 4, b + 5, r, o + 16 * e * 128))
                a("ds_read_b64_tr_b16 v[%d:%d], v%d offset:%d" % (b + 6, b + 7, r, o + 16 * e * 128 + 512))
    def mfmas3(k):
        buf = k % 2
        for e in range(4):
            b = FB3[buf] + 8 * e
            c = ACG if k >= 7 else ACS
            first = (k in (0, 7)) and e == 0
            cs = "0" if first else "v[%d:%d]" % (c, c + 15)
            ty = "bf16" if k >= 7 else "f16"
            a("v_mfma_f32_32x32x16_%s v[%d:%d], v[%d:%d], v[%d:%d], %s" % (ty, c, c + 15, b, b + 3, b + 4, b + 7, cs))
    for k in range(NST):
        a("s_barrier")
        if k == 0:
            stamp(a, 12, s0=98)
            a("s_mov_b32 s50, %d" % WS_SC)
            a("buffer_load_dword v%d, v140, s[%d:%d], s50 offen %s" % (vSC, sWS, sWS + 3, SC))
        ra = Asm(); ma = Asm()
        aa = a; a = ra; reads3(k); a = ma
        if k > 0: mfmas3(k - 1)
        a = aa
        if k > 0:
            for e in range(4):
                a("s_waitcnt lgkmcnt(9)")
                a.items.append(ma.items[e])
                a.items.extend(ra.items[3 * e:3 * e + 3])
        else: a.extend(ra)
    ma = Asm(); aa = a; a = ma; mfmas3(NST - 1); a = aa
    for e in range(4):
        a("s_waitcnt lgkmcnt(%d)" % (9 - 3 * e))
        a.items.append(ma.items[e])
    stamp(a, 13, s0=98)
    a.auto(True)
    a("s_waitcnt vmcnt(0)")
    a("v_rcp_f32 v%d, v%d" % (vSC, vSC))
    a("v_mul_f32 v%d, 0x%08x, v%d" % (vSC, f32bits(A3 / 14.0), vSC))
    L2E = f32bits(-np.log2(np.e))
    G = 48; Sv = 64; E = 80
    for i in range(8): a("v_cvt_pk_bf16_f32 v%d, v%d, v%d" % (E + i, ACG + 2 * i, ACG + 2 * i + 1))
    for i in range(8):
        a("v_lshlrev_b32 v%d, 16, v%d" % (G + 2 * i, E + i))
        a("v_and_b32 v%d, 0xffff0000, v%d" % (G + 2 * i + 1, E + i))
    for i in range(16): a("v_mul_f32 v%d, 0x%08x, v%d" % (E + i, L2E, G + i))
    for i in range(16): a("v_exp_f32 v%d, v%d" % (E + i, E + i))
    for i in range(16): a("v_add_f32 v%d, 1.0, v%d" % (E + i, E + i))
    for i in range(16): a("v_rcp_f32 v%d, v%d" % (E + i, E + i))
    for i in range(16): a("v_mul_f32 v%d, v%d, v%d" % (G + i, G + i, E + i))
    for i in range(16): a("v_mul_f32 v%d, v%d, v%d" % (Sv + i, ACS + i, vSC))
    for i in range(8): a("v_cvt_pk_bf16_f32 v%d, v%d, v%d" % (E + i, G + 2 * i, G + 2 * i + 1))
    for i in range(8): a("v_cvt_pk_bf16_f32 v%d, v%d, v%d" % (E + 8 + i, Sv + 2 * i, Sv + 2 * i + 1))
    for i in range(8):
        a("v_lshlrev_b32 v%d, 16, v%d" % (G + 2 * i, E + i))
        a("v_and_b32 v%d, 0xffff0000, v%d" % (G + 2 * i + 1, E + i))
        a("v_lshlrev_b32 v%d, 16, v%d" % (Sv + 2 * i, E + 8 + i))
        a("v_and_b32 v%d, 0xffff0000, v%d" % (Sv + 2 * i + 1, E + 8 + i))
    for i in range(16): a("v_mul_f32 v%d, v%d, v%d" % (G + i, G + i, Sv + i))
    for i in range(8): a("v_cvt_pk_bf16_f32 v%d, v%d, v%d" % (E + i, G + 2 * i, G + 2 * i + 1))
    for qp in range(2):
        p = E + 4 * qp
        a("v_permlane32_swap_b32 v%d, v%d" % (p, p + 2))
        a("v_permlane32_swap_b32 v%d, v%d" % (p + 1, p + 3))
        x = XR + 4 * qp
        for i in range(4):
            a("v_lshlrev_b32 v%d, 16, v%d" % (G + 2 * i, p + i))
            a("v_and_b32 v%d, 0xffff0000, v%d" % (G + 2 * i + 1, p + i))
            a("v_lshlrev_b32 v%d, 16, v%d" % (Sv + 2 * i, x + i))
            a("v_and_b32 v%d, 0xffff0000, v%d" % (Sv + 2 * i + 1, x + i))
        for i in range(8): a("v_add_f32 v%d, v%d, v%d" % (G + i, G + i, Sv + i))
        o = 96 + 4 * qp
        for i in range(4): a("v_cvt_pk_bf16_f32 v%d, v%d, v%d" % (o + i, G + 2 * i, G + 2 * i + 1))
        a("buffer_store_dwordx4 v[%d:%d], v%d, s[%d:%d], 0 offen offset:%d" % (o, o + 3, vXO, sOUT, sOUT + 3, qp * 32))
    stamp(a, 14, s0=98)
    if STAMPS:
        a("s_waitcnt vmcnt(0)")
        stamp(a, 15, s0=98)
    stamp_flush(a, 0, sWAVE, sWS, s0=98)
    a("s_endpgm")

L_FC = 0
L_COL = 63488
def build_side(a):
    sCOL, sRE, sIM = 40, 41, 42
    srd(a, 4, 50, S * 225 * 2)
    srd(a, 8, 52, S * 225 * 2)
    a("s_sub_u32 s%d, s2, 224" % sCOL)
    a("s_lshl_b32 s%d, s%d, 3" % (sCOL, sCOL))
    a("s_add_u32 s%d, s%d, s%d" % (sCOL, sCOL, sWAVE))
    a("s_lshr_b32 s49, s%d, 4" % sCOL)
    a("s_bfe_u32 s50, s%d, 0x20002" % sCOL)
    a("s_and_b32 s51, s%d, 3" % sCOL)
    a("s_lshl_b32 s52, s51, 6")
    a("v_add_u32 v1, s52, v0")
    a("v_lshlrev_b32 v2, 1, v1")
    a("s_lshl_b32 s52, s49, 7")
    a("s_lshl_b32 s53, s50, 3")
    a("s_add_u32 s52, s52, s53")
    a("s_mul_i32 s52, s52, 450")
    for jj in range(4): a("s_add_u32 s%d, s52, %d" % (56 + jj, jj * 14400))
    NCL = SYNC_BYTES // 262144
    a("s_mul_i32 s60, s%d, %d" % (sCOL, NCL * 1024))
    a("s_add_u32 s60, s60, %d" % WS_SYNC)
    a("v_lshlrev_b32 v4, 4, v0")
    for i in range(4): a("v_mov_b32 v%d, -1" % (8 + i))
    for i in range(NCL):
        a("buffer_store_dwordx4 v[8:11], v4, s[%d:%d], s60 offen offset:%d %s" % (sWS, sWS + 3, i * 1024, SC))
    a("v_mov_b32 v4, 0")
    a("v_mov_b32 v6, %d" % 140000)
    a("ds_write_b32 v6, v4")
    a("s_sub_u32 s60, s2, 224")
    a("s_lshl_b32 s61, s60, %d" % LGF)
    a("s_lshl_b32 s14, s60, 3")
    a("s_add_u32 s60, s61, %d" % WS_WMAX)
    a("s_add_u32 s61, s61, %d" % WS_FZ)
    RR, RI = 16, 48
    for i in range(8):
        for jj in range(4):
            a("buffer_load_ushort v%d, v2, s[4:7], s%d offen offset:%d" % (RR + 4 * i + jj, 56 + jj, i * 450))
            a("buffer_load_ushort v%d, v2, s[8:11], s%d offen offset:%d" % (RI + 4 * i + jj, 56 + jj, i * 450))
        if i == 3:
            a("s_waitcnt vmcnt(32) lgkmcnt(0)")
            a("s_barrier")
            lab = a.newlabel("MK_snf")
            a("s_cmp_lg_u32 s%d, 0" % sWAVE)
            a("s_cbranch_scc1 %s" % lab)
            a("v_mov_b32 v5, 1")
            a("buffer_store_dword v5, v4, s[%d:%d], s14 offen %s" % (sDBG, sDBG + 3, SC))
            a.label(lab)
    a("s_lshl_b32 s52, s49, 5")
    a("s_add_u32 s52, s52, s53")
    a("s_lshl_b32 s52, s52, 4")
    a("s_add_u32 s52, s52, %d" % WS_WT)
    a("s_lshl_b32 s63, s51, 6")
    a("v_and_b32 v6, 15, v0")
    a("v_add_u32 v6, s63, v6")
    a("v_lshrrev_b32 v7, 4, v0")
    a("v_lshlrev_b32 v7, 4, v7")
    a("v_mov_b32 v12, 0x7f000000")
    for n in range(4):
        a("v_add_u32 v13, %d, v6" % (16 * n))
        a("v_lshl_add_u32 v%d, v13, 13, v7" % (8 + n))
        a("v_cmp_gt_u32 vcc, 225, v13")
        a("v_cndmask_b32 v%d, v12, v%d, vcc" % (8 + n, 8 + n))
    a("v_mov_b32 v5, 0")
    a("s_mov_b32 s62, 0x7fff7fff")
    a("s_waitcnt vmcnt(0)")
    for hf in range(2):
        for i in range(4 * hf, 4 * hf + 4):
            for jj in range(4):
                r = RR + 4 * i + jj
                a("v_lshl_or_b32 v%d, v%d, 16, v%d" % (r, RI + 4 * i + jj, r))
                a("v_and_b32 v6, s62, v%d" % r)
                a("v_pk_max_u16 v5, v5, v6")
        Q = [RR + 16 * hf + 4 * p for p in range(4)]
        for jj in range(4):
            a("v_permlane32_swap_b32 v%d, v%d" % (Q[0] + jj, Q[2] + jj))
            a("v_permlane32_swap_b32 v%d, v%d" % (Q[1] + jj, Q[3] + jj))
        for jj in range(4):
            a("v_permlane16_swap_b32 v%d, v%d" % (Q[0] + jj, Q[1] + jj))
            a("v_permlane16_swap_b32 v%d, v%d" % (Q[2] + jj, Q[3] + jj))
        for n in range(4):
            a("buffer_store_dwordx4 v[%d:%d], v%d, s[%d:%d], s52 offen offset:%d %s" % (Q[n], Q[n] + 3, 8 + n, sWS, sWS + 3, hf * 64, SC))
    a("v_lshlrev_b32 v1, 4, v0")
    a("s_lshl_b32 s48, s%d, 10" % sWAVE)
    a("s_add_u32 s49, s48, %d" % TAB_FFT)
    a("v_lshrrev_b32 v6, 16, v5")
    a("v_and_b32 v5, 0xffff, v5")
    a("v_max_u32 v5, v5, v6")
    for x in (1, 2, 4, 8, 16):
        a("ds_swizzle_b32 v6, v5 offset:0x%x" % ((x << 10) | 0x1f))
        a("v_max_u32 v5, v5, v6")
    a("v_mov_b32 v6, v5")
    a("v_permlane32_swap_b32 v5, v6")
    a("v_max_u32 v5, v5, v6")
    a("v_mov_b32 v6, %d" % 140000)
    a("ds_max_u32 v6, v5")
    a("s_waitcnt vmcnt(0) lgkmcnt(0)")
    a("s_barrier")
    stamp(a, 1, s0=98)
    a.auto(False)
    a("s_cmp_lg_u32 s%d, 0" % sWAVE)
    a("s_cbranch_scc1 MK_snw")
    hs_poll(a, "MK_shs0", 8, 9, 4)
    a("ds_read_b32 v5, v6")
    a("s_waitcnt lgkmcnt(0)")
    a("buffer_store_dword v5, v4, s[%d:%d], s60 offen %s" % (sWS, sWS + 3, SC))
    a.label("MK_snw")
    a.auto(True)
    for i in range(8):
        if i == 7:
            a("s_cmp_ge_u32 s%d, 6" % sWAVE)
            a("s_cbranch_scc1 MK_fskip")
        a("s_add_u32 m0, s48, %d" % (L_FC + i * 8192))
        a("buffer_load_dwordx4 v1, s[%d:%d], s49 offen lds" % (sTAB, sTAB + 3))
        a("s_add_u32 s49, s49, 8192")
    a.label("MK_fskip")
    a("s_waitcnt vmcnt(0)")
    a("s_barrier")
    a("s_cmp_gt_u32 s%d, 224" % sCOL)
    a("s_cbranch_scc1 MK_fdone")
    a.auto(False)
    hs_poll(a, "MK_spollf", 8, 9, 16)
    a("s_mov_b32 s55, %d" % WS_WMAX)
    a("v_and_b32 v8, 31, v0")
    a("v_lshlrev_b32 v8, %d, v8" % LGF)
    a.label("MK_spollw")
    a("buffer_load_dword v4, v8, s[%d:%d], s55 offen %s" % (sWS, sWS + 3, SC))
    a("s_waitcnt vmcnt(0)")
    a("v_cmp_lt_u32 vcc, 0xffff, v4")
    spin_check(a, "MK_spollw", "MK_spollw", 16)
    a.auto(True)
    WR = 200
    a("s_lshl_b32 s53, s%d, 13" % sCOL)
    a("s_add_u32 s53, s53, %d" % WS_WT)
    a("s_add_u32 s54, s53, 4096")
    for i in range(8):
        a("buffer_load_dwordx4 v[%d:%d], v1, s[%d:%d], s%d offen offset:%d %s" % (WR + 4 * i, WR + 4 * i + 3, sWS, sWS + 3, 53 + i // 4, (i % 4) * 1024, SC))
    for x in (1, 2, 4, 8, 16):
        a("ds_swizzle_b32 v5, v4 offset:0x%x" % ((x << 10) | 0x1f))
        a("v_max_u32 v4, v4, v5")
    a("v_mov_b32 v5, v4")
    a("v_permlane32_swap_b32 v4, v5")
    a("v_max_u32 v4, v4, v5")
    a("v_lshrrev_b32 v4, 7, v4")
    a("v_max_u32 v4, 1, v4")
    a("v_min_u32 v4, 252, v4")
    a("v_sub_u32 v5, 250, v4")
    a("v_max_i32 v5, 1, v5")
    a("v_lshlrev_b32 v3, 23, v5")
    a("s_mov_b32 s55, %d" % WS_SC)
    a("s_cmp_eq_u32 s%d, 0" % sCOL)
    a("s_cselect_b32 s55, s55, 0x7f000000")
    a("v_mov_b32 v5, 0")
    a("buffer_store_dword v3, v5, s[%d:%d], s55 offen %s" % (sWS, sWS + 3, SC))
    a("s_lshl_b32 s%d, s%d, 1" % (sRE, sCOL))
    a("s_add_u32 s%d, s%d, 1" % (sIM, sRE))
    a("s_cmp_eq_u32 s%d, 224" % sCOL)
    a("s_cselect_b32 s%d, 1, s%d" % (sRE, sRE))
    a("s_cselect_b32 s%d, 4000, s%d" % (sIM, sIM))
    a("s_cmp_eq_u32 s%d, 0" % sCOL)
    a("s_cselect_b32 s%d, 4000, s%d" % (sIM, sIM))
    a("s_lshr_b32 s56, s%d, 5" % sRE)
    a("s_lshl_b32 s56, s56, %d" % (6 + LGF))
    a("s_add_u32 s56, s56, %d" % WS_FY)
    a("s_mul_i32 s%d, s%d, %d" % (sRE, sRE, YSTR))
    a("s_mul_i32 s%d, s%d, %d" % (sIM, sIM, YSTR))
    a("s_lshl_b32 s50, s%d, 13" % sWAVE)
    a("s_add_u32 s50, s50, %d" % L_COL)
    a("s_add_u32 s51, s%d, %d" % (sRE, WS_YT))
    a("s_add_u32 s52, s%d, %d" % (sIM, WS_YT))
    vT = 2
    a("v_lshrrev_b32 v8, 5, v0")
    a("v_bfe_u32 v9, v0, 2, 2")
    a("v_lshl_add_u32 v%d, v8, 2, v9" % vT)
    a("v_lshlrev_b32 v%d, 7, v%d" % (vT, vT))
    a("v_bfe_u32 v9, v0, 4, 1")
    a("v_lshl_add_u32 v%d, v9, 5, v%d" % (vT, vT))
    a("v_and_b32 v9, 3, v0")
    a("v_lshl_add_u32 v%d, v9, 3, v%d" % (vT, vT))
    a("v_add_u32 v%d, s50, v%d" % (vT, vT))
    a.auto(False)
    a("v_lshlrev_b32 v8, %d, v0" % LGF)
    a.label("MK_spollA")
    a("buffer_load_dword v9, v8, s[%d:%d], s56 offen %s" % (sWS, sWS + 3, SC))
    a("s_waitcnt vmcnt(0)")
    a("v_cmp_ne_u32 vcc, 1, v9")
    spin_check(a, "MK_spollA", "MK_spollA", 16)
    stamp(a, 2, s0=98)
    a("s_mov_b32 m0, s50")
    for i in range(4): a("buffer_load_dwordx4 v1, s[%d:%d], s51 offen offset:%d %s lds" % (sWS, sWS + 3, i * 1024, SC))
    a("s_add_u32 m0, s50, 4096")
    for i in range(4): a("buffer_load_dwordx4 v1, s[%d:%d], s52 offen offset:%d %s lds" % (sWS, sWS + 3, i * 1024, SC))
    a("s_waitcnt vmcnt(0)")
    a.auto(True)
    stamp(a, 3, s0=98)
    XR, XI = 16, 32
    AR, AI = 48, 80
    CF = 112
    TW = 160
    TMP = 192
    cfi = [0]
    def cfrag(off):
        b = CF + 4 * (cfi[0] % 12); cfi[0] += 1
        a("ds_read_b128 v[%d:%d], v1 offset:%d" % (b, b + 3, off))
        return b
    def mf(d, x, y, first):
        c = "0" if first else "v[%d:%d]" % (d, d + 15)
        a("v_mfma_f32_32x32x16_f16 v[%d:%d], v[%d:%d], v[%d:%d], %s" % (d, d + 15, x, x + 3, y, y + 3, c))
    F1 = lambda kind, g: L_FC + FFT_F1 + (kind * 2 + g) * 1024
    F2 = lambda kind, t, g: L_FC + FFT_F2 + ((kind * 2 + t) * 4 + g) * 1024
    for part, base in ((0, XR), (1, XI)):
        for mt in range(2):
            for g in range(2):
                b = base + (mt * 2 + g) * 4
                off = part * 4096 + (16 * g) * 128 + mt * 64
                a("ds_read_b64_tr_b16 v[%d:%d], v%d offset:%d" % (b, b + 1, vT, off))
                a("ds_read_b64_tr_b16 v[%d:%d], v%d offset:%d" % (b + 2, b + 3, vT, off + 1024))
    f1 = {(k, g): cfrag(F1(k, g)) for k in range(3) for g in range(2)}
    for mt in range(2):
        for g in range(2):
            xr = XR + (mt * 2 + g) * 4; xi = XI + (mt * 2 + g) * 4
            mf(AR + 16 * mt, xr, f1[(0, g)], g == 0)
            mf(AI + 16 * mt, xi, f1[(0, g)], g == 0)
            mf(AR + 16 * mt, xi, f1[(1, g)], False)
            mf(AI + 16 * mt, xr, f1[(2, g)], False)
    def twiddle(tab, sign):
        def ld(i):
            b = TW + 8 * (i % 4)
            a("ds_read_b128 v[%d:%d], v1 offset:%d" % (b, b + 3, L_FC + tab + i * 2048))
            a("ds_read_b128 v[%d:%d], v1 offset:%d" % (b + 4, b + 7, L_FC + tab + i * 2048 + 1024))
        for i in range(3): ld(i)
        for i in range(8):
            if i + 3 < 8: ld(i + 3)
            c = TW + 8 * (i % 4); s_ = c + 4
            r = AR + 4 * i; m = AI + 4 * i
            for j in range(4): a("v_mul_f32 v%d, v%d, v%d" % (TMP + j, r + j, c + j))
            for j in range(4): a("v_mul_f32 v%d, v%d, v%d" % (TMP + 4 + j, m + j, c + j))
            sg1 = "" if sign < 0 else "-"
            sg2 = "-" if sign < 0 else ""
            for j in range(4): a("v_fma_f32 v%d, %sv%d, v%d, v%d" % (TMP + j, sg1, m + j, s_ + j, TMP + j))
            for j in range(4): a("v_fma_f32 v%d, %sv%d, v%d, v%d" % (TMP + 4 + j, sg2, r + j, s_ + j, TMP + 4 + j))
            a("v_cvt_pk_f16_f32 v%d, v%d, v%d" % (XR + 2 * i, TMP, TMP + 1))
            a("v_cvt_pk_f16_f32 v%d, v%d, v%d" % (XR + 2 * i + 1, TMP + 2, TMP + 3))
            a("v_cvt_pk_f16_f32 v%d, v%d, v%d" % (XI + 2 * i, TMP + 4, TMP + 5))
            a("v_cvt_pk_f16_f32 v%d, v%d, v%d" % (XI + 2 * i + 1, TMP + 6, TMP + 7))
    twiddle(FFT_TWF, -1)
    def stage64(const_is_A, ksin_r, ksin_i):
        for t in range(2):
            fr = {}
            for g in range(2):
                for k in range(3): fr[(k, g)] = cfrag(F2(k, t, g))
            for g in range(4):
                if g + 2 < 4:
                    for k in range(3): fr[(k, g + 2)] = cfrag(F2(k, t, g + 2))
                dr = XR + 4 * g; di = XI + 4 * g
                def mm(d, cst, dat, first):
                    if const_is_A: mf(d, cst, dat, first)
                    else: mf(d, dat, cst, first)
                mm(AR + 16 * t, fr[(0, g)], dr, g == 0)
                mm(AI + 16 * t, fr[(0, g)], di, g == 0)
                mm(AR + 16 * t, fr[(ksin_r, g)], di, False)
                mm(AI + 16 * t, fr[(ksin_i, g)], dr, False)
    stage64(True, 1, 2)
    for i in range(8):
        r = AR + 4 * i; m = AI + 4 * i; w = WR + 4 * i
        c = TW; s_ = TW + 4
        for j in range(4): a("v_lshlrev_b32 v%d, 16, v%d" % (c + j, w + j))
        for j in range(4): a("v_and_b32 v%d, 0xffff0000, v%d" % (s_ + j, w + j))
        for j in range(4): a("v_mul_f32 v%d, v%d, v3" % (c + j, c + j))
        for j in range(4): a("v_mul_f32 v%d, v%d, v3" % (s_ + j, s_ + j))
        for j in range(4): a("v_mul_f32 v%d, v%d, v%d" % (TMP + j, r + j, c + j))
        for j in range(4): a("v_mul_f32 v%d, v%d, v%d" % (TMP + 4 + j, m + j, c + j))
        for j in range(4): a("v_fma_f32 v%d, -v%d, v%d, v%d" % (TMP + j, m + j, s_ + j, TMP + j))
        for j in range(4): a("v_fma_f32 v%d, v%d, v%d, v%d" % (TMP + 4 + j, r + j, s_ + j, TMP + 4 + j))
        a("v_cvt_pk_f16_f32 v%d, v%d, v%d" % (XR + 2 * i, TMP, TMP + 1))
        a("v_cvt_pk_f16_f32 v%d, v%d, v%d" % (XR + 2 * i + 1, TMP + 2, TMP + 3))
        a("v_cvt_pk_f16_f32 v%d, v%d, v%d" % (XI + 2 * i, TMP + 4, TMP + 5))
        a("v_cvt_pk_f16_f32 v%d, v%d, v%d" % (XI + 2 * i + 1, TMP + 6, TMP + 7))
    stage64(False, 2, 1)
    twiddle(FFT_TWI, +1)
    f1 = {(k, g): cfrag(F1(k, g)) for k in range(3) for g in range(2)}
    for nt in range(2):
        for g in range(2):
            xr = XR + (nt * 2 + g) * 4; xi = XI + (nt * 2 + g) * 4
            mf(AR + 16 * nt, xr, f1[(0, g)], g == 0)
            mf(AI + 16 * nt, xi, f1[(0, g)], g == 0)
            mf(AR + 16 * nt, xi, f1[(2, g)], False)
            mf(AI + 16 * nt, xr, f1[(1, g)], False)
    a("s_mov_b32 s56, 0x%08x" % f32bits(A5 * 2))
    a("s_cmp_ge_u32 s%d, %d" % (sIM, 4000 * YSTR))
    a("s_cselect_b32 s56, 0x%08x, s56" % f32bits(A5))
    a("v_and_b32 v8, 15, v0")
    a("v_lshlrev_b32 v8, 7, v8")
    seg_off(a, 9, 10)
    a("v_add_u32 v8, v8, v9")
    a("v_add_u32 v9, 2048, v8")
    a("s_add_u32 s51, s%d, %d" % (sRE, WS_ZT))
    a("s_add_u32 s52, s%d, %d" % (sIM, WS_ZT))
    for part, acc, sreg in ((0, AR, 51), (1, AI, 52)):
        for nt in range(2):
            c = acc + 16 * nt
            o = XR + 16 * part + 8 * nt
            for j in range(16): a("v_mul_f32 v%d, s56, v%d" % (c + j, c + j))
            for j in range(8): a("v_cvt_pk_f16_f32 v%d, v%d, v%d" % (o + j, c + 2 * j, c + 2 * j + 1))
            store64(a, o, o + 4, 8, 9, sWS, "s%d" % sreg, nt * 64)
    stamp(a, 4, s0=98)
    a("s_waitcnt vmcnt(0)")
    a.label("MK_fdone")
    a("s_barrier")
    a("s_cmp_lg_u32 s%d, 0" % sWAVE)
    a("s_cselect_b32 s61, 0x7f000000, s61")
    a("v_mov_b32 v4, 0")
    a("v_mov_b32 v5, 1")
    a("buffer_store_dword v5, v4, s[%d:%d], s61 offen %s" % (sWS, sWS + 3, SC))
    stamp(a, 5, s0=98)
    stamp_flush(a, 0, sWAVE, sWS, s0=98)
```

```python
import sys
sys.path.insert(0, "gen")
from common2 import *
import mk
NAME = "recurrent_scan__spectral_gfnet__mixer_gmlp__prompt_kernel"
def build(path, aslist=True):
    hdr = open("recurrent_scan__spectral_gfnet__mixer_gmlp__prompt.s.ref").read().split("; Override")[0]
    if aslist: l = "; @launch kernel=%s grid=(256,1,1) block=(512,1,1) lds=%d\n" % (NAME, mk.MK_LDS)
    else: l = "; @launch grid=(256,1,1) block=(512,1,1) lds=%d\n" % mk.MK_LDS
    txt = hdr + l + HEADER + mk.build_mk(NAME) + '.section .rodata,"a"\n.p2align 6\n' + kernel_desc(NAME, 256, 102, 256) + tables_asm()
    open(path, "w").write(txt)
if __name__ == "__main__":
    build(sys.argv[1], len(sys.argv) < 3)
```

```python
from common2 import *
import k2 as K2
import k1
from k2 import tr_base, kc_bases, dma_tr_voff, dma_kc_voff

L_W = 0
L_CS = 57344
L_MR = 57856
L_LN = 59904
L_FLAG = 60928
L_T1 = 65536
L_RA = 65536
L_X = 98304
L_RB = 98304
STG3 = 16384
MK_LDS = 163840

GC0 = -2.0 * np.sqrt(2.0 / np.pi) * np.log2(np.e)
GC1 = GC0 * 0.044715

sX, sWIN, sWS, sTAB, sDBG, sWSP, sB, sWO, sOUT = 16, 20, 24, 28, 32, 68, 72, 76, 80
sWAVE, sCG, sRB, sROT2 = 36, 37, 38, 39
sKC = 40
sDT, sST, sR3a, sR3b = 92, 93, 94, 95
sTO = 96
SC = "sc1"
SCL = os.environ.get("SCL", "sc1")
NPRE = int(os.environ.get("NPRE", "4"))
SEG = int(os.environ.get("SEG", "16"))
NL2 = int(os.environ.get("NL2", "3"))
PSLEEP = int(os.environ.get("PSLEEP", "16"))
Z1PRE = int(os.environ.get("Z1PRE", "3"))
LGF = int(np.log2(FSTR))
TIMEOUT = 500000

P3C = {0: 9, 1: 10, 2: 11, 3: 0, 4: 12, 5: 13, 6: 1,
       7: 14, 8: 15, 9: 2, 10: 3, 11: 16, 12: 17, 13: 9, 14: 10, 15: 11, 16: 0, 17: 12, 18: 13, 19: 1, 20: 14}
P3C_SCHED = {-3: [0, 1, 2], -2: [3, 4, 5], -1: [6, 7, 8], 0: [9, 10], 1: [11, 12], 2: [13], 3: [14], 4: [15], 5: [16], 6: [17], 7: [18], 8: [19], 9: [20]}
_dr = [8, 4, 18, 19, 5, 6]
P3D = {0: 4, 1: 5, 2: 6, 3: 8, 4: 4, 5: 5, 6: 6}
for _k in range(7, 21): P3D[_k] = _dr[(_k - 7) % 6]
P3D_SCHED = {-1: [0, 1, 2, 3], 2: [4], 3: [5], 4: [6], 6: [7, 8, 9, 10], 7: [11], 8: [12]}
for _j in range(9, 17): P3D_SCHED[_j] = [_j + 4]
def _check_p3():
    free = {4: -9, 5: -9, 6: -9, 8: -6, 9: -5, 10: -4, 11: -3, 0: -2, 1: -1, 2: 0, 3: 0, 12: -2, 13: -2, 14: -1, 15: -1, 16: 0, 17: 0, 18: 0, 19: 0}
    ev = sorted([(t, "C", k) for t, L in P3C_SCHED.items() for k in L] + [(t, "D", k) for t, L in P3D_SCHED.items() for k in L])
    seen = set()
    for t, ty, k in ev:
        sl = (P3C if ty == "C" else P3D)[k]
        assert free[sl] <= t, (t, ty, k, sl, free[sl])
        assert t < k, (t, ty, k)
        free[sl] = k + 2
        seen.add((ty, k))
    assert len(seen) == 42
_check_p3()
def a_slot_addr(s): return (L_RA + 8192 * s) if s < 4 else 8192 * (s - 4)

def spin_check(a, label_retry, name, slp=4):
    a("s_cbranch_vccz %s_ok" % name)
    a("s_sub_u32 s%d, s%d, 1" % (sTO, sTO))
    a("s_cmp_eq_u32 s%d, 0" % sTO)
    a("s_cbranch_scc1 MK_end")
    a("s_sleep %d" % slp)
    a("s_branch %s" % label_retry)
    a.label("%s_ok" % name)

def gelu_pk(a, acc, csoff, vcsa, PR, outregs, T):
    CS = [T, T + 4]; X = T + 8; P = T + 12; E = T + 16
    groups = [(st, q) for st in range(2) for q in range(4)]
    def pr(i): return "v[%d:%d]" % (PR + 2 * i, PR + 2 * i + 1)
    def p2(b): return "v[%d:%d]" % (b, b + 1)
    def ldcs(i):
        st, q = groups[i]
        a("ds_read_b128 v[%d:%d], v%d offset:%d" % (CS[i % 2], CS[i % 2] + 3, vcsa, csoff + (32 * st + 8 * q) * 4))
    ldcs(0); ldcs(1)
    for gi, (st, q) in enumerate(groups):
        c = CS[gi % 2]; A = acc + 16 * st + 4 * q
        for i in (0, 2): a("v_pk_mul_f32 %s, %s, %s" % (p2(X + i), pr(0), p2(c + i)))
        if gi + 2 < 8: ldcs(gi + 2)
        for i in (0, 2): a("v_pk_fma_f32 %s, %s, %s, %s" % (p2(X + i), p2(A + i), pr(1), p2(X + i)))
        for i in (0, 2): a("v_pk_mul_f32 %s, %s, %s" % (p2(P + i), p2(X + i), p2(X + i)))
        for i in (0, 2): a("v_pk_fma_f32 %s, %s, %s, %s" % (p2(P + i), p2(P + i), pr(3), pr(2)))
        for i in (0, 2): a("v_pk_mul_f32 %s, %s, %s" % (p2(P + i), p2(P + i), p2(X + i)))
        for i in range(4): a("v_exp_f32 v%d, v%d" % (E + i, P + i))
        for i in (0, 2): a("v_pk_add_f32 %s, %s, %s" % (p2(E + i), p2(E + i), pr(4)))
        for i in range(4): a("v_rcp_f32 v%d, v%d" % (E + i, E + i))
        for i in (0, 2): a("v_pk_mul_f32 %s, %s, %s" % (p2(X + i), p2(X + i), p2(E + i)))
        a("v_cvt_pk_bf16_f32 v%d, v%d, v%d" % (outregs[2 * gi], X, X + 1))
        a("v_cvt_pk_bf16_f32 v%d, v%d, v%d" % (outregs[2 * gi + 1], X + 2, X + 3))

def store64(a, A, B, vaddr0, vaddr1, srdb, sreg, off, flags=SC):
    for b4 in (A, B):
        a("v_permlane32_swap_b32 v%d, v%d" % (b4, b4 + 2))
        a("v_permlane32_swap_b32 v%d, v%d" % (b4 + 1, b4 + 3))
    for i in range(4): a("v_permlane16_swap_b32 v%d, v%d" % (A + i, B + i))
    a("buffer_store_dwordx4 v[%d:%d], v%d, s[%d:%d], %s offen offset:%d %s" % (A, A + 3, vaddr0, srdb, srdb + 3, sreg, off, flags))
    a("buffer_store_dwordx4 v[%d:%d], v%d, s[%d:%d], %s offen offset:%d %s" % (B, B + 3, vaddr1, srdb, srdb + 3, sreg, off, flags))

def seg_off(a, dst, t):
    a("v_bfe_u32 v%d, v0, 4, 1" % dst)
    a("v_lshlrev_b32 v%d, 5, v%d" % (dst, dst))
    a("v_lshrrev_b32 v%d, 5, v0" % t)
    a("v_lshl_add_u32 v%d, v%d, 4, v%d" % (dst, t, dst))

def cstamp(a, sreg, val, idx):
    lab = a.newlabel("MK_cs")
    a("s_cmp_lg_u32 s%d, %d" % (sreg, val))
    a("s_cbranch_scc1 %s" % lab)
    a("s_memrealtime s[98:99]")
    a("s_waitcnt lgkmcnt(0)")
    a("v_writelane_b32 v255, s98, %d" % idx)
    a.label(lab)

def build_mk(name):
    a = Asm()
    a("s_cmp_ge_u32 s2, 256")
    a("s_cbranch_scc1 MK_end")
    a("s_load_dwordx16 s[48:63], s[0:1], 0")
    a("s_load_dwordx4 s[84:87], s[0:1], 64")
    a("s_load_dwordx2 s[88:89], s[0:1], 80")
    if os.environ.get("DBGT"): a("s_memrealtime s[100:101]")
    a("v_lshrrev_b32 v1, 6, v0")
    a("v_and_b32 v0, 63, v0")
    a("v_readfirstlane_b32 s%d, v1" % sWAVE)
    a("s_cmp_lg_u32 s%d, 3" % sWAVE)
    a("s_cbranch_scc1 MK_nopf")
    a("s_getpc_b64 s[4:5]")
    a("s_add_u32 s4, s4, %s@rel32@lo+4" % name)
    a("s_addc_u32 s5, s5, %s@rel32@hi+12" % name)
    a("s_and_b32 s5, s5, 0xffff")
    a("s_mov_b32 s6, MK_codeend-%s" % name)
    a("s_mov_b32 s7, 0x20000")
    a("s_lshr_b32 s8, s2, 3")
    a("s_lshl_b32 s8, s8, 10")
    a("s_add_u32 s9, s8, 32768")
    a("v_lshlrev_b32 v1, 4, v0")
    a("s_mov_b32 m0, 61440")
    a("buffer_load_dwordx4 v1, s[4:7], s8 offen lds")
    a("buffer_load_dwordx4 v1, s[4:7], s9 offen lds")
    a.label("MK_nopf")
    a("s_and_b32 s8, s2, 7")
    a("s_lshr_b32 s9, s2, 3")
    divmod7(a, 10, 11, 9)
    a("s_and_b32 s12, s8, 1")
    a("s_lshr_b32 s13, s8, 1")
    a("s_mul_i32 s14, s12, 7")
    a("s_add_u32 s%d, s14, s11" % sCG)
    a("s_lshl_b32 s14, s13, 2")
    a("s_add_u32 s%d, s14, s10" % sRB)
    a("s_lshl_b32 s14, s10, 1")
    a("s_add_u32 s%d, s14, s11" % sR3b)
    a("s_cmp_ge_u32 s%d, 7" % sR3b)
    a("s_cselect_b32 s14, 7, 0")
    a("s_sub_u32 s%d, s%d, s14" % (sKC, sR3b))
    a("s_cmp_ge_u32 s2, 224")
    a("s_cbranch_scc1 MK_common2")
    a("s_cmp_lt_u32 s%d, 4" % sWAVE)
    a("s_cbranch_scc1 MK_common2")
    def common2():
        a("s_getpc_b64 s[28:29]")
        a("s_add_u32 s28, s28, tab0@rel32@lo+4")
        a("s_addc_u32 s29, s29, tab0@rel32@hi+12")
        a("s_and_b32 s29, s29, 0xffff")
        a("s_mov_b32 s30, %d" % TAB_SIZE)
        a("s_mov_b32 s31, 0x20000")
        a("s_mov_b32 s%d, %d" % (sTO, TIMEOUT))
        for j in range(1, 7):
            a("s_add_u32 s%d, s%d, 1" % (sKC + j, sKC + j - 1))
            a("s_cmp_eq_u32 s%d, 7" % (sKC + j))
            a("s_cselect_b32 s%d, 0, s%d" % (sKC + j, sKC + j))
        if SEG == 32:
            a("s_mul_i32 s14, s11, 5")
            a("s_lshl_b32 s15, s10, 3")
        elif SEG == 16:
            a("s_mul_i32 s14, s11, 9")
            a("s_lshr_b32 s14, s14, 2")
            a("s_lshl_b32 s15, s10, 2")
        else:
            a("s_mov_b32 s14, s11")
            a("s_lshl_b32 s15, s10, 1")
        a("s_add_u32 s%d, s14, s15" % sROT2)
        a("s_mov_b32 s%d, s11" % sDT)
        a("s_lshl_b32 s14, s12, 2")
        a("s_lshl_b32 s15, s13, 3")
        a("s_add_u32 s14, s14, s15")
        a("s_add_u32 s%d, s14, s10" % sST)
        a("s_lshl_b32 s14, s11, 1")
        a("s_mul_i32 s15, s10, 3")
        a("s_add_u32 s%d, s14, s15" % sR3a)
        a("s_waitcnt lgkmcnt(0)")
        srd(a, sX, 48, S * D * 2)
        srd(a, sWIN, 56, D * 1792 * 2)
        srd(a, sWS, 88, WS_SIZE)
        srd(a, sDBG, 86, 256)
        srd(a, sWSP, 58, S * S * 2)
        srd(a, sB, 60, S * 2)
        srd(a, sWO, 62, FH * D * 2)
        srd(a, sOUT, 84, S * D * 2)
        stamp(a, 0, s0=98)
    helper_start(a)
    common2()
    build_helper(a)
    a.label("MK_common2")
    common2()
    a("s_cmp_ge_u32 s2, 224")
    a("s_cbranch_scc1 MK_side")
    a.auto(True)
    build_compute(a)
    a.label("MK_side")
    a.auto(True)
    build_side(a)
    a.label("MK_end")
    a("s_endpgm")
    a.label("MK_codeend")
    return kernel_begin(name) + a.text()

sHW = 97
sO2, sO4, sO1 = 64, 65, 66
def iss_x(a, j):
    a("s_lshl_b32 s54, s%d, 7" % (sKC + j))
    for i in range(4):
        a("s_add_u32 m0, s%d, %d" % (sO4, L_X + (j % 4) * 16384 + i * 1024))
        a("buffer_load_dwordx4 v%d, s[%d:%d], s54 offen lds" % (1 + i, sX, sX + 3))
    return 4
def iss_w(a, part, j):
    a("s_mul_i32 s54, s%d, %d" % (sKC + j, 64 * 3584))
    if part == 0: a("s_add_u32 s54, s54, 1792")
    for i in range(2):
        a("s_add_u32 m0, s%d, %d" % (sO2, L_W + j * 8192 + i * 1024))
        a("buffer_load_dwordx4 v%d, s[%d:%d], s54 offen lds" % (5 + i, sWIN, sWIN + 3))
    return 2

def helper_start(a):
    a.auto(False)
    a("s_sub_u32 s%d, s%d, 4" % (sHW, sWAVE))
    dma_kc_voff(a, 1, 896, 0, 10, 11)
    dma_kc_voff(a, 2, 896, 1, 10, 11)
    a("s_lshl_b32 s14, s%d, 7" % sRB)
    a("s_lshl_b32 s15, s%d, 5" % sHW)
    a("s_add_u32 s14, s14, s15")
    a("s_mul_i32 s14, s14, 896")
    a("v_add_u32 v1, s14, v1")
    a("s_add_u32 s14, s14, %d" % (8 * 896))
    a("v_add_u32 v2, s14, v2")
    a("v_add_u32 v3, %d, v1" % (16 * 896))
    a("v_add_u32 v4, %d, v2" % (16 * 896))
    dma_tr_voff(a, 5, 3584, 10, 11)
    a("s_mul_i32 s14, s%d, %d" % (sHW, 16 * 3584))
    a("s_lshl_b32 s15, s%d, 7" % sCG)
    a("s_add_u32 s14, s14, s15")
    a("v_add_u32 v5, s14, v5")
    a("v_add_u32 v6, %d, v5" % (8 * 3584))
    a("s_lshl_b32 s%d, s%d, 11" % (sO2, sHW))
    a("s_lshl_b32 s%d, s%d, 12" % (sO4, sHW))
    a("s_lshl_b32 s%d, s%d, 10" % (sO1, sHW))
    a("s_waitcnt lgkmcnt(0)")
    srd(a, sX, 48, S * D * 2)
    srd(a, sWIN, 56, D * 1792 * 2)
    iss_x(a, 0); iss_w(a, 0, 0)

def build_helper(a):
    a.auto(False)
    a("s_mov_b32 s%d, s%d" % (sWAVE, sHW))
    a("s_mov_b32 s50, s%d" % sO2)
    def iss_t(j):
        a("s_lshl_b32 s54, s%d, 12" % (sKC + j))
        a("s_add_u32 s54, s54, s53")
        a("s_add_u32 m0, s%d, %d" % (sO1, L_T1 + j * 4096))
        a("buffer_load_dwordx4 v7, s[%d:%d], s54 offen lds" % (sTAB, sTAB + 3))
        return 1
    q = [(("c", 0), 6)]
    q.append((("c", 1), iss_x(a, 1) + iss_w(a, 0, 1)))
    a("v_lshlrev_b32 v7, 4, v0")
    a("s_mul_i32 s53, s%d, 28672" % sCG)
    a("s_add_u32 s53, s53, s%d" % sO1)
    a("v_lshlrev_b32 v10, 3, v0")
    a("v_mov_b32 v12, 0\nv_mov_b32 v13, 0")
    a("ds_write_b64 v10, v[12:13] offset:%d" % L_CS)
    for i in range(4): a("ds_write_b64 v12, v[12:13] offset:%d" % (L_FLAG + 8 * i))
    tr_base(a, 16, 10, 11)
    a("s_and_b32 s8, s%d, 1" % sWAVE)
    a("s_lshl_b32 s8, s8, 6")
    a("v_xor_b32 v17, s8, v16")
    a("s_lshr_b32 s8, s%d, 1" % sWAVE)
    a("s_lshl_b32 s8, s8, 12")
    a("v_add_u32 v16, s8, v17")
    a("v_mov_b32 v18, 0\nv_mov_b32 v19, 0")
    WB = 40
    def wait_for(tag):
        idx = [i for i, (t, c) in enumerate(q) if t == tag][0]
        a("s_waitcnt vmcnt(%d)" % min(63, sum(c for t, c in q[idx + 1:])))
    def cs_reads(j, va=16, ne=2, wb=WB):
        for e in range(ne):
            off = L_W + (64 * j + 16 * e) * 128
            a("ds_read_b64_tr_b16 v[%d:%d], v%d offset:%d" % (wb + 4 * e, wb + 4 * e + 1, va, off))
            a("ds_read_b64_tr_b16 v[%d:%d], v%d offset:%d" % (wb + 4 * e + 2, wb + 4 * e + 3, va, off + 512))
    def cs_acc(n, wb=WB):
        for i in range(n):
            a("v_lshlrev_b32 v20, 16, v%d" % (wb + i))
            a("v_and_b32 v21, 0xffff0000, v%d" % (wb + i))
            a("v_add_f32 v18, v18, v20")
            a("v_add_f32 v19, v19, v21")
    def cs_finish(part):
        a("v_add_f32 v19, v18, v19")
        half_sum(a, 19, 21)
        a("v_and_b32 v21, 31, v0")
        a("v_lshlrev_b32 v21, 2, v21")
        a("s_and_b32 s8, s%d, 1" % sWAVE)
        a("s_lshl_b32 s8, s8, 7")
        a("v_add_u32 v21, s8, v21")
        a("s_mov_b32 exec_hi, 0")
        a("ds_add_f32 v21, v19 offset:%d" % (L_CS + 256 * part))
        a("s_mov_b32 exec_hi, -1")
    a("s_waitcnt lgkmcnt(0)")
    for j in range(7):
        if STAMPS == 2: stamp(a, 2 * j + 2, s0=98)
        wait_for(("c", j))
        if STAMPS == 2: stamp(a, 2 * j + 3, s0=98)
        a("s_barrier")
        if j == 0: stamp(a, 1, s0=98)
        cs_reads(j)
        if j + 2 < 7:
            q.append((("c", j + 2), iss_x(a, j + 2) + iss_w(a, 0, j + 2)))
        if j == 5: q.append((("t", 0), sum(iss_t(t) for t in range(7))))
        a("s_waitcnt lgkmcnt(0)")
        cs_acc(8)
        if j == 6: cs_finish(0)
    a("v_mov_b32 v34, v5\nv_mov_b32 v35, v6")
    dma_tr_voff(a, 1, 1792, 10, 11)
    a("s_mul_i32 s8, s%d, %d" % (sWAVE, 16 * 1792))
    a("s_lshl_b32 s9, s%d, 7" % sCG)
    a("s_add_u32 s8, s8, s9")
    a("s_add_u32 s8, s8, %d" % WS_Z2)
    a("v_add_u32 v1, s8, v1")
    a("v_add_u32 v2, %d, v1" % (8 * 1792))
    dma_kc_voff(a, 3, 4096, 0, 10, 11)
    dma_kc_voff(a, 4, 4096, 1, 10, 11)
    a("s_lshl_b32 s8, s%d, 7" % sRB)
    a("s_lshl_b32 s9, s%d, 5" % sWAVE)
    a("s_add_u32 s8, s8, s9")
    a("s_lshl_b32 s8, s8, 12")
    a("v_add_u32 v3, s8, v3")
    a("s_add_u32 s8, s8, %d" % (8 * 4096))
    a("v_add_u32 v4, s8, v4")
    a("v_add_u32 v5, %d, v3" % (16 * 4096))
    a("v_add_u32 v6, %d, v4" % (16 * 4096))
    def kb2(sk):
        a("s_add_u32 s53, %s, s%d" % (sk, sROT2))
        a("s_and_b32 s53, s53, %d" % (SEG - 1))
        if SEG < 32:
            a("s_and_b32 s58, %s, %d" % (sk, 32 - SEG))
            a("s_or_b32 s53, s53, s58")
    def issA(slot, sk):
        kb2(sk)
        a("s_mul_i32 s54, s53, %d" % (64 * 1792))
        for i in range(2):
            a("s_add_u32 m0, s%d, %d" % (sO2, a_slot_addr(slot) + i * 1024))
            a("buffer_load_dwordx4 v%d, s[%d:%d], s54 offen %s lds" % (1 + i, sWS, sWS + 3, SCL))
    def issB(slot, sk, vb=3, ldsadj=0, dummy=False):
        kb2(sk)
        a("s_lshl_b32 s55, s53, 7")
        for i in range(4):
            if dummy: a("s_mov_b32 m0, 61440")
            else: a("s_add_u32 m0, s%d, %d" % (sO4, L_RB + slot * 16384 + i * 1024 + ldsadj))
            a("buffer_load_dwordx4 v%d, s[%d:%d], s55 offen lds" % (vb + i, sWSP, sWSP + 3))
    a("s_waitcnt vmcnt(0) lgkmcnt(0)")
    a("s_barrier")
    a("s_cmp_lt_u32 s%d, 2" % sWAVE)
    a("s_cbranch_scc1 MK_poller")
    a("v_subrev_u32 v36, %d, v34" % (32 * 3584))
    a("v_subrev_u32 v37, %d, v35" % (32 * 3584))
    for t in range(7):
        a("s_mul_i32 s54, s%d, %d" % (sKC + t, 64 * 3584))
        for i, (v, adj) in enumerate(((34, 0), (35, 1024), (36, -4096), (37, -3072))):
            a("s_add_u32 m0, s%d, %d" % (sO2, L_W + t * 8192 + adj))
            a("buffer_load_dwordx4 v%d, s[%d:%d], s54 offen lds" % (v, sWIN, sWIN + 3))
    for i in range(4): a("v_subrev_u32 v%d, %d, v%d" % (32 + i, 64 * 4096, 3 + i))
    for k in range(4):
        a("s_mov_b32 s56, %d" % k)
        issB(k, "s56"); issB(k, "s56", 32, -8192)
        if k == 0:
            a("s_waitcnt vmcnt(8)")
            a("s_lshl_b32 s9, s%d, 2" % sWAVE)
            a("v_mov_b32 v21, s9")
            a("v_mov_b32 v9, 1")
            a("ds_write_b32 v21, v9 offset:%d" % (L_FLAG + 8))
    for k in range(NL2):
        a("s_mov_b32 s56, %d" % (SEG % 32 + k + (4 if SEG == 32 else 0)))
        issB(0, "s56", dummy=True); issB(0, "s56", 32, dummy=True)
    a("v_mov_b32 v8, 0")
    a.label("MK_bw1")
    a("ds_read_b64 v[10:11], v8 offset:%d" % (L_FLAG + 16))
    a("s_waitcnt lgkmcnt(0)")
    a("v_and_b32 v10, v10, v11")
    a("v_cmp_ne_u32 vcc, 1, v10")
    spin_check(a, "MK_bw1", "MK_bw1", 1)
    a("v_mov_b32 v18, 0\nv_mov_b32 v19, 0")
    cs_reads(0, 17, 4, 40)
    for j in range(7):
        if j + 1 < 7:
            cs_reads(j + 1, 17, 4, 40 + 16 * ((j + 1) % 2))
            a("s_waitcnt lgkmcnt(8)")
        else: a("s_waitcnt lgkmcnt(0)")
        cs_acc(16, 40 + 16 * (j % 2))
    cs_finish(1)
    a("s_branch MK_hjoin")
    a.label("MK_poller")
    hs_poll(a, "MK_pollf", 8, 9)
    stamp(a, 2, s0=98)
    a("v_lshlrev_b32 v8, 3, v0")
    a("s_mul_i32 s8, s%d, 14336" % sRB)
    a("s_lshl_b32 s9, s%d, 9" % sWAVE)
    a("s_add_u32 s8, s8, s9")
    a("s_add_u32 s8, s8, %d" % WS_ST)
    for i in range(1, 4): a("s_add_u32 s%d, s8, %d" % (8 + i, 4096 * i))
    a("s_sleep %d" % PSLEEP)
    a.label("MK_polls")
    for p in range(14):
        a("buffer_load_dwordx2 v[%d:%d], v8, s[%d:%d], s%d offen offset:%d %s" % (48 + 2 * p, 49 + 2 * p, sWS, sWS + 3, 8 + p // 4, (p % 4) * 1024, SC))
    a("s_waitcnt vmcnt(0)")
    a("v_or3_b32 v9, v48, v49, v50")
    for p in range(51, 75, 2): a("v_or3_b32 v9, v9, v%d, v%d" % (p, p + 1))
    a("v_or_b32 v9, v9, v75")
    a("v_and_b32 v9, 1, v9")
    a("v_cmp_ne_u32 vcc, 0, v9")
    spin_check(a, "MK_polls", "MK_polls", 1)
    for p in range(0, 14, 2): a("v_pk_add_f32 v[%d:%d], v[%d:%d], v[%d:%d]" % (48 + 2 * p, 49 + 2 * p, 48 + 2 * p, 49 + 2 * p, 50 + 2 * p, 51 + 2 * p))
    for p in (0, 4, 8): a("v_pk_add_f32 v[%d:%d], v[%d:%d], v[%d:%d]" % (48 + 2 * p, 49 + 2 * p, 48 + 2 * p, 49 + 2 * p, 52 + 2 * p, 53 + 2 * p))
    a("v_pk_add_f32 v[48:49], v[48:49], v[56:57]")
    a("v_pk_add_f32 v[64:65], v[64:65], v[72:73]")
    a("v_pk_add_f32 v[48:49], v[48:49], v[64:65]")
    ln_finish(a, 48, 49, 896, 28, 29, 9, 10)
    a("v_mul_f32 v28, v28, v29")
    a("v_sub_f32 v28, 0, v28")
    a("s_lshl_b32 s9, s%d, 9" % sWAVE)
    a("v_add_u32 v21, s9, v8")
    a("ds_write_b64 v21, v[28:29] offset:%d" % L_LN)
    a("s_lshl_b32 s9, s%d, 2" % sWAVE)
    a("v_mov_b32 v21, s9")
    a("v_mov_b32 v9, 1")
    a("ds_write_b32 v21, v9 offset:%d" % (L_FLAG + 4))
    stamp(a, 3, s0=98)
    a("s_cmp_lg_u32 s%d, 0" % sWAVE)
    a("s_cbranch_scc1 MK_hjoin")
    a("v_lshlrev_b32 v8, %d, v0" % LGF)
    a("s_lshl_b32 s54, s%d, %d" % (sCG, 6 + LGF))
    a("s_add_u32 s54, s54, %d" % WS_FA)
    a("s_sleep %d" % PSLEEP)
    a.label("MK_pollA")
    a("buffer_load_dword v9, v8, s[%d:%d], s54 offen %s" % (sWS, sWS + 3, SC))
    a("s_waitcnt vmcnt(0)")
    a("v_cmp_ne_u32 vcc, 1, v9")
    spin_check(a, "MK_pollA", "MK_pollA", 1)
    a.label("MK_hjoin")
    a("s_waitcnt lgkmcnt(0)")
    a("s_barrier")
    a.label("MK_goA")
    stamp(a, 4, s0=98)
    q = []
    def IA(k):
        a("s_mov_b32 s56, %d" % k); issA(k % 8, "s56"); q.append((("A", k), 2))
    def IB(k):
        a("s_mov_b32 s56, %d" % k); issB(k % 4, "s56"); q.append((("B", k), 4))
    def waitq(tags):
        idx = max([i for i, (t, c) in enumerate(q) if t in tags] + [-1])
        if idx >= 0:
            a("s_waitcnt vmcnt(%d)" % min(63, sum(c for t, c in q[idx + 1:])))
            del q[:idx + 1]
    IA(0); IA(1); IA(2)
    sched = {0: [("A", 3), ("A", 4)], 1: [("A", 5), ("A", 6)], 2: [("A", 7), ("B", 4)]}
    for k in range(3, 32):
        L = []
        if k + 2 < 32: L.append(("B", k + 2))
        if k + 5 < 32: L.append(("A", k + 5))
        sched[k] = L
    for k in range(30):
        waitq([("A", k), ("B", k)])
        a("s_barrier")
        for t, kk in sched[k]: (IA if t == "A" else IB)(kk)
    a("s_cmp_lt_u32 s%d, 2" % sWAVE)
    a("s_cbranch_scc1 MK_h3data")
    q_save = list(q)
    a("s_sub_u32 s58, s%d, 2" % sWAVE)
    a("s_lshl_b32 s59, s58, 12")
    dma_tr_voff(a, 24, 896, 10, 11)
    a("s_mul_i32 s8, s58, %d" % (32 * 896))
    a("s_lshl_b32 s9, s%d, 7" % sDT)
    a("s_add_u32 s8, s8, s9")
    a("v_add_u32 v24, s8, v24")
    for i in range(1, 4): a("v_add_u32 v%d, %d, v24" % (24 + i, 8 * 896 * i))
    a("v_lshlrev_b32 v28, 4, v0")
    a("s_mul_i32 s8, s%d, 57344" % sDT)
    a("s_add_u32 s8, s8, s59")
    a("s_add_u32 s8, s8, %d" % TAB_T2)
    a("v_add_u32 v28, s8, v28")
    def kb3(k):
        if k >= 7:
            a("s_add_u32 s53, s%d, %d" % (sR3a, k - 7))
            a("s_cmp_ge_u32 s53, 28\ns_cselect_b32 s54, 28, 0\ns_sub_u32 s53, s53, s54")
            a("s_cmp_ge_u32 s53, 14\ns_cselect_b32 s54, 14, 0\ns_sub_u32 s53, s53, s54")
        else:
            a("s_add_u32 s53, s%d, %d" % (sR3b, k))
            a("s_cmp_ge_u32 s53, 14\ns_cselect_b32 s54, 14, 0\ns_sub_u32 s53, s53, s54")
            a("s_cmp_ge_u32 s53, 7\ns_cselect_b32 s54, 7, 0\ns_sub_u32 s53, s53, s54")
    def IC(k):
        kb3(k)
        base = P3C[k] * 8192
        if k >= 7:
            a("s_mul_i32 s54, s53, %d" % (64 * 896))
            for i in range(4):
                a("s_add_u32 m0, s59, %d" % (base + i * 1024))
                a("buffer_load_dwordx4 v%d, s[%d:%d], s54 offen lds" % (24 + i, sWO, sWO + 3))
        else:
            a("s_lshl_b32 s54, s53, 13")
            a("s_add_u32 m0, s59, %d" % base)
            for i in range(4):
                a("buffer_load_dwordx4 v28, s[%d:%d], s54 offen offset:%d lds" % (sTAB, sTAB + 3, i * 1024))
        q.append((("C", k), 4))
    for k in P3C_SCHED[-3]: IC(k)
    waitq([("A", 30), ("B", 30)]); a("s_barrier")
    for k in P3C_SCHED[-2]: IC(k)
    waitq([("A", 31), ("B", 31)]); a("s_barrier")
    for k in P3C_SCHED[-1]: IC(k)
    for j in range(21):
        waitq([("C", j)]); a("s_barrier")
        for k in P3C_SCHED.get(j, []): IC(k)
    stamp_flush(a, 0, sWAVE, sWS, s0=98, waveadd=4)
    a("s_endpgm")
    a.label("MK_h3data")
    q[:] = q_save
    a("s_lshl_b32 s59, s%d, 12" % sWAVE)
    dma_kc_voff(a, 24, 1792, 0, 10, 11)
    dma_kc_voff(a, 25, 1792, 1, 10, 11)
    a("s_lshl_b32 s8, s%d, 6" % sST)
    a("s_lshl_b32 s9, s%d, 5" % sWAVE)
    a("s_add_u32 s8, s8, s9")
    a("s_mul_i32 s8, s8, 1792")
    a("s_add_u32 s8, s8, %d" % WS_U)
    a("v_add_u32 v24, s8, v24")
    a("s_add_u32 s8, s8, %d" % (8 * 1792))
    a("v_add_u32 v25, s8, v25")
    a("v_add_u32 v26, %d, v24" % (16 * 1792))
    a("v_add_u32 v27, %d, v25" % (16 * 1792))
    dma_tr_voff(a, 28, YSTR, 10, 11)
    a("s_mul_i32 s8, s%d, %d" % (sWAVE, 32 * YSTR))
    a("s_lshl_b32 s9, s%d, 7" % sST)
    a("s_add_u32 s8, s8, s9")
    a("s_add_u32 s8, s8, %d" % WS_ZT)
    a("v_add_u32 v28, s8, v28")
    for i in range(1, 4): a("v_add_u32 v%d, %d, v28" % (28 + i, 8 * YSTR * i))
    def ID(k):
        kb3(k)
        base = P3D[k] * 8192
        if k >= 7: a("s_lshl_b32 s54, s53, 7"); vb = 24
        else: a("s_mul_i32 s54, s53, %d" % (64 * YSTR)); vb = 28
        for i in range(4):
            a("s_add_u32 m0, s59, %d" % (base + i * 1024))
            a("buffer_load_dwordx4 v%d, s[%d:%d], s54 offen %s lds" % (vb + i, sWS, sWS + 3, SC))
        q.append((("D", k), 4))
    waitq([("A", 30), ("B", 30)]); a("s_barrier")
    waitq([("A", 31), ("B", 31)]); a("s_barrier")
    a("v_and_b32 v8, 31, v0")
    a("v_lshlrev_b32 v8, %d, v8" % LGF)
    a("s_mov_b32 s54, %d" % WS_FZ)
    a.label("MK_pollZ")
    a("buffer_load_dword v9, v8, s[%d:%d], s54 offen %s" % (sWS, sWS + 3, SC))
    a("s_waitcnt vmcnt(0)")
    a("v_cmp_ne_u32 vcc, 1, v9")
    spin_check(a, "MK_pollZ", "MK_pollZ", 4)
    stamp(a, 5, s0=98)
    for k in P3D_SCHED[-1]: ID(k)
    for j in range(21):
        waitq([("D", j)]); a("s_barrier")
        if j == 6:
            a("v_lshlrev_b32 v8, %d, v0" % LGF)
            a("s_lshr_b32 s54, s%d, 1" % sST)
            a("s_lshl_b32 s54, s54, %d" % (6 + LGF))
            a("s_add_u32 s54, s54, %d" % WS_FB)
            a("s_and_b32 s55, s%d, 1" % sST)
            a("v_bfe_u32 v10, v0, 1, 1")
            a("v_cmp_eq_u32 s[8:9], s55, v10")
            a("v_cmp_gt_u32 s[10:11], 56, v0")
            a("s_and_b64 s[8:9], s[8:9], s[10:11]")
            a.label("MK_pollB")
            a("buffer_load_dword v9, v8, s[%d:%d], s54 offen %s" % (sWS, sWS + 3, SC))
            a("s_waitcnt vmcnt(0)")
            a("v_cmp_ne_u32 vcc, 1, v9")
            a("s_nop 1")
            a("s_and_b64 vcc, vcc, s[8:9]")
            spin_check(a, "MK_pollB", "MK_pollB", 1)
            stamp(a, 6, s0=98)
        for k in P3D_SCHED.get(j, []): ID(k)
    stamp_flush(a, 0, sWAVE, sWS, s0=98, waveadd=4)
    a("s_endpgm")

def fa_addr(a, sd):
    a("s_lshl_b32 s%d, s%d, 6" % (sd, sCG))
    a("s_lshl_b32 s%d, s%d, 2" % (sd + 1, sRB))
    a("s_add_u32 s%d, s%d, s%d" % (sd, sd, sd + 1))
    a("s_add_u32 s%d, s%d, s%d" % (sd, sd, sWAVE))
    a("s_lshl_b32 s%d, s%d, %d" % (sd, sd, LGF))
    a("s_add_u32 s%d, s%d, %d" % (sd, sd, WS_FA))
def fb_addr(a, sd):
    a("s_lshl_b32 s%d, s%d, 6" % (sd, sRB))
    a("s_lshl_b32 s%d, s%d, 2" % (sd + 1, sCG))
    a("s_add_u32 s%d, s%d, s%d" % (sd, sd, sd + 1))
    a("s_add_u32 s%d, s%d, s%d" % (sd, sd, sWAVE))
    a("s_lshl_b32 s%d, s%d, %d" % (sd, sd, LGF))
    a("s_add_u32 s%d, s%d, %d" % (sd, sd, WS_FB))

def hs_poll(a, name, va, vd, slp=4):
    a("v_and_b32 v%d, 31, v0" % va)
    a("v_lshlrev_b32 v%d, 3, v%d" % (va, va))
    a.label(name)
    a("buffer_load_dword v%d, v%d, s[%d:%d], 0 offen %s" % (vd, va, sDBG, sDBG + 3, SC))
    a("s_waitcnt vmcnt(0)")
    a("v_cmp_ne_u32 vcc, 1, v%d" % vd)
    spin_check(a, name, name, slp)

def build_compute(a):
    XF = 16; ACA = 128; ACB = 160; WF = 192; Z2P = 216; T = 232
    vTR = [1, 2]; vKX = 3
    vSUM, vSQ, vONE = 7, 8, 9
    vSTO, vCSA, vCST, vBV = 10, 11, 12, 13
    vNMR, vR = 252, 253
    PR = WF
    a("s_lshl_b32 s55, s%d, 7" % sRB)
    a("s_lshl_b32 s56, s%d, 5" % sWAVE)
    a("s_add_u32 s55, s55, s56")
    tr_base(a, vTR[0], T, T + 1)
    a("v_xor_b32 v%d, 64, v%d" % (vTR[1], vTR[0]))
    kc_bases(a, vKX, T, T + 1)
    a("s_lshl_b32 s8, s%d, 12" % sWAVE)
    a("s_add_u32 s8, s8, %d" % L_X)
    for e in range(4): a("v_add_u32 v%d, s8, v%d" % (vKX + e, vKX + e))
    a("v_and_b32 v%d, 31, v0" % T)
    a("v_lshlrev_b32 v%d, 2, v%d" % (T + 1, T))
    a("s_lshl_b32 s8, s%d, 7" % sCG)
    a("s_add_u32 s9, s8, %d" % TAB_CST)
    a("buffer_load_dword v%d, v%d, s[%d:%d], s9 offen" % (vCST, T + 1, sTAB, sTAB + 3))
    a("v_add_u32 v%d, s55, v%d" % (T + 1, T))
    a("v_lshlrev_b32 v%d, 1, v%d" % (T + 3, T + 1))
    a("buffer_load_ushort v%d, v%d, s[%d:%d], 0 offen" % (vBV, T + 3, sB, sB + 3))
    a("v_and_b32 v%d, 15, v0" % (T + 1))
    a("v_add_u32 v%d, s55, v%d" % (T + 1, T + 1))
    a("v_mul_u32_u24 v%d, 1792, v%d" % (T + 1, T + 1))
    seg_off(a, 15, T + 2)
    a("v_add3_u32 v%d, v15, v%d, s8" % (vSTO, T + 1))
    a("v_add_u32 v14, %d, v%d" % (16 * 1792, vSTO))
    a("v_lshlrev_b32 v%d, 4, v%d" % (vCSA, T + 2))
    a("v_mov_b32 v%d, 0x3f803f80" % vONE)
    a("v_mov_b32 v%d, 0" % vSUM)
    a("v_mov_b32 v%d, 0" % vSQ)
    def wreads(j, e):
        b = WF + 8 * (e % 3)
        off = L_W + (64 * j + 16 * e) * 128
        for st in range(2):
            a("ds_read_b64_tr_b16 v[%d:%d], v%d offset:%d" % (b + 4 * st, b + 4 * st + 1, vTR[st], off))
            a("ds_read_b64_tr_b16 v[%d:%d], v%d offset:%d" % (b + 4 * st + 2, b + 4 * st + 3, vTR[st], off + 512))
    def wmfma(acc, j, e):
        b = WF + 8 * (e % 3); x = XF + 16 * j + 4 * e
        for st in range(2):
            c = "0" if (j == 0 and e == 0) else "v[%d:%d]" % (acc + 16 * st, acc + 16 * st + 15)
            a("v_mfma_f32_32x32x16_bf16 v[%d:%d], v[%d:%d], v[%d:%d], %s" % (acc + 16 * st, acc + 16 * st + 15, b + 4 * st, b + 4 * st + 3, x, x + 3, c))
    def xstats(j):
        b = XF + 16 * j
        for i in range(16):
            a("v_dot2_f32_bf16 v%d, v%d, v%d, v%d" % (vSUM, b + i, vONE, vSUM))
            a("v_dot2_f32_bf16 v%d, v%d, v%d, v%d" % (vSQ, b + i, b + i, vSQ))
    WB2 = [ACB, WF]
    def p1_reads(j):
        L = []
        for e in range(4):
            x = XF + 16 * j + 4 * e
            L.append("ds_read_b128 v[%d:%d], v%d offset:%d" % (x, x + 3, vKX + e, (j % 4) * 16384))
            b = WB2[j % 2] + 8 * e
            off = L_W + (64 * j + 16 * e) * 128
            for st in range(2):
                L.append("ds_read_b64_tr_b16 v[%d:%d], v%d offset:%d" % (b + 4 * st, b + 4 * st + 1, vTR[st], off))
                L.append("ds_read_b64_tr_b16 v[%d:%d], v%d offset:%d" % (b + 4 * st + 2, b + 4 * st + 3, vTR[st], off + 512))
        return L
    def p1_mfma(j):
        L = []
        for e in range(4):
            b = WB2[j % 2] + 8 * e; x = XF + 16 * j + 4 * e
            for st in range(2):
                c = "0" if (j == 0 and e == 0) else "v[%d:%d]" % (ACA + 16 * st, ACA + 16 * st + 15)
                L.append("v_mfma_f32_32x32x16_bf16 v[%d:%d], v[%d:%d], v[%d:%d], %s" % (ACA + 16 * st, ACA + 16 * st + 15, b + 4 * st, b + 4 * st + 3, x, x + 3, c))
        return L
    for j in range(8):
        if j < 7:
            if STAMPS == 2: stamp(a, 2 * j + 2, s0=98)
            a("s_barrier")
            if STAMPS == 2: stamp(a, 2 * j + 3, s0=98)
            if j == 0: stamp(a, 1, s0=98)
        R = p1_reads(j) if j < 7 else []
        M = p1_mfma(j - 1) if j > 0 else []
        if not M:
            for r in R: a(r)
        else:
            for e in range(4):
                a(M[2 * e])
                for r in R[5 * e:5 * e + 3]: a(r)
                a(M[2 * e + 1])
                for r in R[5 * e + 3:5 * e + 5]: a(r)
            xstats(j - 1)
    stamp(a, 2, s0=98)
    half_sum(a, vSUM, T); half_sum(a, vSQ, T + 1)
    ln_finish(a, vSUM, vSQ, 448, T + 2, vR, T, T + 1)
    a("v_sub_f32 v%d, 0, v%d" % (T + 2, T + 2))
    a("v_mul_f32 v%d, v%d, v%d" % (vNMR, T + 2, vR))
    a("v_mul_f32 v%d, 0x%08x, v%d" % (T + 3, f32bits(A1), vR))
    a("v_and_b32 v%d, 31, v0" % T)
    a("v_lshlrev_b32 v%d, 2, v%d" % (T, T))
    a("s_lshl_b32 s8, s%d, 9" % sWAVE)
    a("v_add_u32 v%d, s8, v%d" % (T, T))
    a("ds_write_b32 v%d, v%d offset:%d" % (T, T + 2, L_MR))
    a("ds_write_b32 v%d, v%d offset:%d" % (T, T + 3, L_MR + 128))
    def load_pr():
        a("v_mov_b32 v%d, v%d" % (PR, vNMR))
        a("v_mov_b32 v%d, v%d" % (PR + 1, vNMR))
        a("v_mov_b32 v%d, v%d" % (PR + 2, vR))
        a("v_mov_b32 v%d, v%d" % (PR + 3, vR))
        for i, val in enumerate((GC0, GC1, 1.0)):
            a("v_mov_b32 v%d, 0x%08x" % (PR + 4 + 2 * i, f32bits(val)))
            a("v_mov_b32 v%d, 0x%08x" % (PR + 5 + 2 * i, f32bits(val)))
    load_pr()
    a("v_and_b32 v%d, 31, v0" % (T + 22))
    a("v_lshlrev_b32 v%d, 3, v%d" % (T + 22, T + 22))
    a("buffer_load_dword v%d, v%d, s[%d:%d], 0 offen %s" % (T + 22, T + 22, sDBG, sDBG + 3, SC))
    a("s_barrier")
    gelu_pk(a, ACA, L_CS, vCSA, PR, [Z2P + i for i in range(16)], T)
    a("v_mov_b32 v%d, 0" % vSUM)
    a("v_mov_b32 v%d, 0" % vSQ)
    for i in range(16):
        a("v_dot2_f32_bf16 v%d, v%d, v%d, v%d" % (vSUM, Z2P + i, vONE, vSUM))
        a("v_dot2_f32_bf16 v%d, v%d, v%d, v%d" % (vSQ, Z2P + i, Z2P + i, vSQ))
    half_sum(a, vSUM, T); half_sum(a, vSQ, T + 1)
    a("v_and_b32 v%d, -2, v%d" % (T + 2, vSUM))
    a("v_and_b32 v%d, -2, v%d" % (T + 3, vSQ))
    a("s_mul_i32 s8, s%d, 14" % sRB)
    a("s_add_u32 s8, s8, s%d" % sCG)
    a("s_lshl_b32 s8, s8, 10")
    a("s_lshl_b32 s9, s%d, 8" % sWAVE)
    a("s_add_u32 s8, s8, s9")
    a("s_add_u32 s8, s8, %d" % WS_ST)
    a("v_and_b32 v%d, 31, v0" % T)
    a("v_lshlrev_b32 v%d, 3, v%d" % (T, T))
    a("v_cmp_ne_u32 vcc, 1, v%d" % (T + 22))
    a("s_cbranch_vccz MK_chs_done")
    a.auto(False)
    hs_poll(a, "MK_chs", T + 4, T + 5)
    a.auto(True)
    a.label("MK_chs_done")
    a("buffer_store_dwordx2 v[%d:%d], v%d, s[%d:%d], s8 offen %s" % (T + 2, T + 3, T, sWS, sWS + 3, SC))
    stamp(a, 3, s0=98)
    ACY = ACA
    a("v_lshlrev_b32 v%d, 4, v0" % (T + 4))
    a("v_add_u32 v%d, %d, v%d" % (T + 4, L_T1, T + 4))
    def tread(st):
        b = WF + 4 * (st % 6)
        a("ds_read_b128 v[%d:%d], v%d offset:%d" % (b, b + 3, T + 4, st * 1024))
    for st in range(5): tread(st)
    a("s_lshl_b32 s9, s%d, 9" % sWAVE)
    a("v_add_u32 v%d, s9, v%d" % (T + 1, vCSA))
    NM = ACB; RA = ACB + 16
    for st in range(28):
        b = WF + 4 * (st % 6); x = XF + 4 * st
        c = "0" if st == 0 else "v[%d:%d]" % (ACY, ACY + 15)
        a("v_mfma_f32_32x32x16_bf16 v[%d:%d], v[%d:%d], v[%d:%d], %s" % (ACY, ACY + 15, x, x + 3, b, b + 3, c))
        if st + 5 < 28: tread(st + 5)
        if 23 <= st < 27:
            qq = st - 23
            a("ds_read_b128 v[%d:%d], v%d offset:%d" % (NM + 4 * qq, NM + 4 * qq + 3, T + 1, L_MR + 32 * qq))
            a("ds_read_b128 v[%d:%d], v%d offset:%d" % (RA + 4 * qq, RA + 4 * qq + 3, T + 1, L_MR + 128 + 32 * qq))
    a("v_and_b32 v%d, 15, v0" % (T + 2))
    a("s_lshl_b32 s9, s%d, 5" % sCG)
    a("v_add_u32 v%d, s9, v%d" % (T + 2, T + 2))
    a("v_mul_u32_u24 v%d, %d, v%d" % (T + 2, YSTR, T + 2))
    a("v_add_u32 v%d, v15, v%d" % (T + 2, T + 2))
    a("v_add_u32 v%d, %d, v%d" % (T + 3, 16 * YSTR, T + 2))
    a("s_lshl_b32 s9, s55, 1")
    a("s_add_u32 s9, s9, %d" % WS_YT)
    for r in range(16): a("v_fma_f32 v%d, v%d, v%d, v%d" % (ACY + r, NM + r, vCST, ACY + r))
    for r in range(16): a("v_mul_f32 v%d, v%d, v%d" % (ACY + r, ACY + r, RA + r))
    YP = T + 4
    for r in range(8): a("v_cvt_pk_f16_f32 v%d, v%d, v%d" % (YP + r, ACY + 2 * r, ACY + 2 * r + 1))
    store64(a, YP, YP + 4, T + 2, T + 3, sWS, "s9", 0)
    U = ACA
    def z1chunk(j):
        wreads(j, 0); wreads(j, 1); wreads(j, 2)
        wmfma(ACB, j, 0)
        wreads(j, 3)
        wmfma(ACB, j, 1); wmfma(ACB, j, 2); wmfma(ACB, j, 3)
    for i in range(16):
        a("v_lshlrev_b32 v%d, 16, v%d" % (U + 2 * i, Z2P + i))
        a("v_and_b32 v%d, 0xffff0000, v%d" % (U + 2 * i + 1, Z2P + i))
    a("v_and_b32 v%d, 31, v0" % T)
    a("v_lshlrev_b32 v%d, 3, v%d" % (T, T))
    a("s_lshl_b32 s9, s%d, 8" % sWAVE)
    a("v_add_u32 v%d, s9, v%d" % (T, T))
    a("s_mov_b32 s8, %d" % WS_Z2)
    fa_addr(a, 10)
    a("s_lshr_b32 s9, s%d, 1" % sWAVE)
    a("s_lshl_b32 s9, s9, 2")
    a("v_mov_b32 v%d, s9" % (T + 1))
    a("v_mov_b32 v%d, 0" % (T + 16))
    a("v_mov_b32 v%d, 1" % (T + 17))
    a.auto(False)
    a.label("MK_cw1")
    a("ds_read_b64 v[%d:%d], v%d offset:%d" % (T + 2, T + 3, T + 16, L_FLAG + 16))
    a("s_waitcnt lgkmcnt(0)")
    a("v_and_b32 v%d, v%d, v%d" % (T + 2, T + 2, T + 3))
    a("v_cmp_ne_u32 vcc, 1, v%d" % (T + 2))
    spin_check(a, "MK_cw1", "MK_cw1", 0)
    a.auto(True)
    for j in range(Z1PRE): z1chunk(j)
    stamp(a, 4, s0=98)
    a.auto(False)
    a.label("MK_cwln")
    a("ds_read_b32 v%d, v%d offset:%d" % (T + 2, T + 1, L_FLAG + 4))
    a("s_waitcnt lgkmcnt(0)")
    a("v_cmp_ne_u32 vcc, 1, v%d" % (T + 2))
    spin_check(a, "MK_cwln", "MK_cwln", 0)
    a.auto(True)
    stamp(a, 5, s0=98)
    a("ds_read_b32 v%d, v%d offset:%d" % (T + 12, T, L_LN))
    a("ds_read_b32 v%d, v%d offset:%d" % (T + 13, T, L_LN))
    a("ds_read_b32 v%d, v%d offset:%d" % (T + 14, T, L_LN + 4))
    a("ds_read_b32 v%d, v%d offset:%d" % (T + 15, T, L_LN + 4))
    for st in range(2):
        for i in range(8 * st, 8 * st + 8):
            a("v_pk_fma_f32 v[%d:%d], v[%d:%d], v[%d:%d], v[%d:%d]" % (U + 2 * i, U + 2 * i + 1, U + 2 * i, U + 2 * i + 1, T + 14, T + 15, T + 12, T + 13))
        for i in range(8 * st, 8 * st + 8):
            a("v_cvt_pk_bf16_f32 v%d, v%d, v%d" % (Z2P + i, U + 2 * i, U + 2 * i + 1))
        store64(a, Z2P + 8 * st, Z2P + 8 * st + 4, vSTO, 14, sWS, "s8", st * 64)
    a("s_add_u32 s9, s10, %d" % (WS_FY - WS_FA))
    a("s_waitcnt vmcnt(4)")
    a("buffer_store_dword v%d, v%d, s[%d:%d], s9 offen %s" % (T + 17, T + 16, sWS, sWS + 3, SC))
    stamp(a, 6, s0=98)
    for j in range(Z1PRE, 7): z1chunk(j)
    a("s_waitcnt vmcnt(1)")
    a("buffer_store_dword v%d, v%d, s[%d:%d], s10 offen %s" % (T + 17, T + 16, sWS, sWS + 3, SC))
    stamp(a, 7, s0=98)
    a("s_barrier")
    Z1P = Z2P
    a("v_mov_b32 v%d, 0x%08x" % (WF + 20, f32bits(GC0)))
    a("s_mov_b32 s%d, 0x%08x" % (k1.sC1, f32bits(GC1)))
    g1 = k1.gelu_stream(ACB, L_CS + 256, vCSA, vNMR, vR, [Z1P + i for i in range(16)], WF)
    stamp(a, 8, s0=98)
    a.auto(False)
    ACC = 16; FB = [48, 96]
    vTA = [1, 2]; vTAh = [144, 145]; vKB = 3
    for st in range(2): a("v_add_u32 v%d, %d, v%d" % (vTAh[st], L_RA, vTR[st]))
    def reads_list(k):
        L = []
        buf = k % 2; sa = k % 8
        ta, ao = (vTAh, sa * 8192) if sa < 4 else (vTA, (sa - 4) * 8192)
        for e in range(4):
            b = FB[buf] + 12 * e
            L.append("ds_read_b128 v[%d:%d], v%d offset:%d" % (b + 8, b + 11, vKB + e, (k % 4) * 16384))
            for st in range(2):
                L.append("ds_read_b64_tr_b16 v[%d:%d], v%d offset:%d" % (b + 4 * st, b + 4 * st + 1, ta[st], ao + 16 * e * 128))
                L.append("ds_read_b64_tr_b16 v[%d:%d], v%d offset:%d" % (b + 4 * st + 2, b + 4 * st + 3, ta[st], ao + 16 * e * 128 + 512))
        return L
    def mfma_list(buf):
        L = []
        for e in range(4):
            b = FB[buf] + 12 * e
            for st in range(2):
                c = ACC + 16 * st
                L.append("v_mfma_f32_32x32x16_bf16 v[%d:%d], v[%d:%d], v[%d:%d], v[%d:%d]" % (c, c + 15, b + 4 * st, b + 4 * st + 3, b + 8, b + 11, c, c + 15))
        return L
    def mfmas(buf):
        for m in mfma_list(buf): a(m)
    for r in range(32): a("v_mov_b32 v%d, 0" % (ACC + r))
    a("s_barrier")
    stamp(a, 9, s0=98)
    a.auto(True)
    for r in reads_list(0): a(r)
    gi = 0
    G = g1.items
    for u in range(8):
        a("s_barrier")
        R = reads_list(1 + u); M = mfma_list(u % 2)
        for e in range(4):
            for half in range(2):
                a(M[2 * e + half])
                for r in (R[5 * e:5 * e + 3] if half == 0 else R[5 * e + 3:5 * e + 5]): a(r)
                a.items.extend(G[gi:gi + 5]); gi += 5
    assert gi >= len(G), (gi, len(G))
    a.auto(False)
    a("s_mov_b32 s52, 1")
    a.label("MK_cloop")
    for u in range(8):
        if u == 7:
            a("s_cmp_eq_u32 s52, 3")
            a("s_cbranch_scc1 MK_cdone")
        a("s_barrier")
        R = reads_list(1 + u); M = mfma_list(u % 2)
        for e in range(4):
            a("s_waitcnt lgkmcnt(15)")
            a(M[2 * e])
            for r in R[5 * e:5 * e + 3]: a(r)
            a(M[2 * e + 1])
            for r in R[5 * e + 3:5 * e + 5]: a(r)
    a("s_add_u32 s52, s52, 1")
    a("s_branch MK_cloop")
    a.label("MK_cdone")
    M = mfma_list(1)
    for e in range(4):
        a("s_waitcnt lgkmcnt(%d)" % (15 - 5 * e))
        a(M[2 * e]); a(M[2 * e + 1])
    stamp(a, 10, s0=98)
    a.auto(True)
    a("v_lshlrev_b32 v%d, 16, v%d" % (vBV, vBV))
    a("s_mov_b32 s10, %d" % WS_U)
    G = 48; Zu = 80; P = 112
    for st in range(2):
        for q0 in (0, 2):
            i0 = 8 * st + 2 * q0
            c = ACC + 2 * i0
            for i in range(4): a("v_cvt_pk_bf16_f32 v%d, v%d, v%d" % (P + i0 + i, c + 2 * i, c + 2 * i + 1))
            for i in range(4):
                a("v_lshlrev_b32 v%d, 16, v%d" % (G + 2 * i, P + i0 + i))
                a("v_and_b32 v%d, 0xffff0000, v%d" % (G + 2 * i + 1, P + i0 + i))
            for i in range(8): a("v_add_f32 v%d, v%d, v%d" % (G + i, G + i, vBV))
            for i in range(4): a("v_cvt_pk_bf16_f32 v%d, v%d, v%d" % (P + i0 + i, G + 2 * i, G + 2 * i + 1))
            for i in range(4):
                a("v_lshlrev_b32 v%d, 16, v%d" % (G + 2 * i, P + i0 + i))
                a("v_and_b32 v%d, 0xffff0000, v%d" % (G + 2 * i + 1, P + i0 + i))
                a("v_lshlrev_b32 v%d, 16, v%d" % (Zu + 2 * i, Z1P + i0 + i))
                a("v_and_b32 v%d, 0xffff0000, v%d" % (Zu + 2 * i + 1, Z1P + i0 + i))
            for i in range(4): a("v_pk_mul_f32 v[%d:%d], v[%d:%d], v[%d:%d]" % (G + 2 * i, G + 2 * i + 1, G + 2 * i, G + 2 * i + 1, Zu + 2 * i, Zu + 2 * i + 1))
            for i in range(4): a("v_cvt_pk_bf16_f32 v%d, v%d, v%d" % (P + i0 + i, G + 2 * i, G + 2 * i + 1))
        store64(a, P + 8 * st, P + 8 * st + 4, vSTO, 14, sWS, "s10", st * 64)
    ACG, ACS = 16, 32
    FB3 = [48, 80]
    vTRa, vK3, vFR, vTRb = 1, 2, 6, 7
    XR = 128; vXO = 8; vSC = 9
    fb_addr(a, 8)
    a("s_and_b32 s48, s%d, 1" % sWAVE)
    a("s_lshr_b32 s49, s%d, 1" % sWAVE)
    tr_base(a, vTRa, 140, 141)
    a("s_lshl_b32 s50, s49, 6")
    a("v_xor_b32 v%d, s50, v%d" % (vTRb, vTRa))
    a("s_lshl_b32 s50, s48, 6")
    a("v_xor_b32 v%d, s50, v%d" % (vTRa, vTRa))
    kc_bases(a, vK3, 140, 141)
    a("s_lshl_b32 s50, s49, 12")
    for e in range(4): a("v_add_u32 v%d, s50, v%d" % (vK3 + e, vK3 + e))
    a("v_lshlrev_b32 v%d, 4, v0" % vFR)
    a("s_lshl_b32 s50, s48, 10")
    a("v_add_u32 v%d, s50, v%d" % (vFR, vFR))
    for r in range(1, 8):
        a("v_add_u32 v%d, 65536, v%d" % (150 + r, r))
        a("v_add_u32 v%d, 131072, v%d" % (160 + r, r))
    def ad(r, slot): return (r, r + 150, r + 160)[slot // 8], (slot % 8) * 8192
    a("s_lshl_b32 s50, s%d, 6" % sST)
    a("s_lshl_b32 s51, s49, 5")
    a("s_add_u32 s50, s50, s51")
    a("v_and_b32 v140, 31, v0")
    a("v_add_u32 v140, s50, v140")
    a("v_mul_u32_u24 v140, 896, v140")
    a("v_lshrrev_b32 v141, 5, v0")
    a("v_lshl_add_u32 v%d, v141, 4, v140" % vXO)
    a("s_lshl_b32 s50, s%d, 7" % sDT)
    a("s_lshl_b32 s51, s48, 6")
    a("s_add_u32 s50, s50, s51")
    a("v_add_u32 v%d, s50, v%d" % (vXO, vXO))
    a("v_mov_b32 v140, 0")
    a("v_mov_b32 v141, 1")
    a("s_waitcnt vmcnt(0)")
    a("buffer_store_dword v141, v140, s[%d:%d], s8 offen %s" % (sWS, sWS + 3, SC))
    stamp(a, 11, s0=98)
    for qp in range(2):
        a("buffer_load_dwordx4 v[%d:%d], v%d, s[%d:%d], 0 offen offset:%d" % (XR + 4 * qp, XR + 4 * qp + 3, vXO, sX, sX + 3, qp * 32))
    a.auto(False)
    NST = 21
    def reads3(k):
        buf = k % 2
        for e in range(4):
            b = FB3[buf] + 8 * e
            if k >= 7:
                r, o = ad(vTRa, P3C[k])
                a("ds_read_b64_tr_b16 v[%d:%d], v%d offset:%d" % (b, b + 1, r, o + 16 * e * 128))
                a("ds_read_b64_tr_b16 v[%d:%d], v%d offset:%d" % (b + 2, b + 3, r, o + 16 * e * 128 + 512))
                r, o = ad(vK3 + e, P3D[k])
                a("ds_read_b128 v[%d:%d], v%d offset:%d" % (b + 4, b + 7, r, o))
            else:
                r, o = ad(vFR, P3C[k])
                a("ds_read_b128 v[%d:%d], v%d offset:%d" % (b, b + 3, r, o + e * 2048))
                r, o = ad(vTRb, P3D[k])
                a("ds_read_b64_tr_b16 v[%d:%d], v%d offset:%d" % (b + 4, b + 5, r, o + 16 * e * 128))
                a("ds_read_b64_tr_b16 v[%d:%d], v%d offset:%d" % (b + 6, b + 7, r, o + 16 * e * 128 + 512))
    def mfmas3(k):
        buf = k % 2
        for e in range(4):
            b = FB3[buf] + 8 * e
            c = ACG if k >= 7 else ACS
            first = (k in (0, 7)) and e == 0
            cs = "0" if first else "v[%d:%d]" % (c, c + 15)
            ty = "bf16" if k >= 7 else "f16"
            a("v_mfma_f32_32x32x16_%s v[%d:%d], v[%d:%d], v[%d:%d], %s" % (ty, c, c + 15, b, b + 3, b + 4, b + 7, cs))
    for k in range(NST):
        a("s_barrier")
        if k == 0:
            stamp(a, 12, s0=98)
            a("s_mov_b32 s50, %d" % WS_SC)
            a("buffer_load_dword v%d, v140, s[%d:%d], s50 offen %s" % (vSC, sWS, sWS + 3, SC))
        ra = Asm(); ma = Asm()
        aa = a; a = ra; reads3(k); a = ma
        if k > 0: mfmas3(k - 1)
        a = aa
        if k > 0:
            for e in range(4):
                a("s_waitcnt lgkmcnt(9)")
                a.items.append(ma.items[e])
                a.items.extend(ra.items[3 * e:3 * e + 3])
        else: a.extend(ra)
    ma = Asm(); aa = a; a = ma; mfmas3(NST - 1); a = aa
    for e in range(4):
        a("s_waitcnt lgkmcnt(%d)" % (9 - 3 * e))
        a.items.append(ma.items[e])
    stamp(a, 13, s0=98)
    a.auto(True)
    a("s_waitcnt vmcnt(0)")
    a("v_rcp_f32 v%d, v%d" % (vSC, vSC))
    a("v_mul_f32 v%d, 0x%08x, v%d" % (vSC, f32bits(A3 / 14.0), vSC))
    L2E = f32bits(-np.log2(np.e))
    G = 48; Sv = 64; E = 80
    for i in range(8): a("v_cvt_pk_bf16_f32 v%d, v%d, v%d" % (E + i, ACG + 2 * i, ACG + 2 * i + 1))
    for i in range(8):
        a("v_lshlrev_b32 v%d, 16, v%d" % (G + 2 * i, E + i))
        a("v_and_b32 v%d, 0xffff0000, v%d" % (G + 2 * i + 1, E + i))
    for i in range(16): a("v_mul_f32 v%d, 0x%08x, v%d" % (E + i, L2E, G + i))
    for i in range(16): a("v_exp_f32 v%d, v%d" % (E + i, E + i))
    for i in range(16): a("v_add_f32 v%d, 1.0, v%d" % (E + i, E + i))
    for i in range(16): a("v_rcp_f32 v%d, v%d" % (E + i, E + i))
    for i in range(16): a("v_mul_f32 v%d, v%d, v%d" % (G + i, G + i, E + i))
    for i in range(16): a("v_mul_f32 v%d, v%d, v%d" % (Sv + i, ACS + i, vSC))
    for i in range(8): a("v_cvt_pk_bf16_f32 v%d, v%d, v%d" % (E + i, G + 2 * i, G + 2 * i + 1))
    for i in range(8): a("v_cvt_pk_bf16_f32 v%d, v%d, v%d" % (E + 8 + i, Sv + 2 * i, Sv + 2 * i + 1))
    for i in range(8):
        a("v_lshlrev_b32 v%d, 16, v%d" % (G + 2 * i, E + i))
        a("v_and_b32 v%d, 0xffff0000, v%d" % (G + 2 * i + 1, E + i))
        a("v_lshlrev_b32 v%d, 16, v%d" % (Sv + 2 * i, E + 8 + i))
        a("v_and_b32 v%d, 0xffff0000, v%d" % (Sv + 2 * i + 1, E + 8 + i))
    for i in range(16): a("v_mul_f32 v%d, v%d, v%d" % (G + i, G + i, Sv + i))
    for i in range(8): a("v_cvt_pk_bf16_f32 v%d, v%d, v%d" % (E + i, G + 2 * i, G + 2 * i + 1))
    for qp in range(2):
        p = E + 4 * qp
        a("v_permlane32_swap_b32 v%d, v%d" % (p, p + 2))
        a("v_permlane32_swap_b32 v%d, v%d" % (p + 1, p + 3))
        x = XR + 4 * qp
        for i in range(4):
            a("v_lshlrev_b32 v%d, 16, v%d" % (G + 2 * i, p + i))
            a("v_and_b32 v%d, 0xffff0000, v%d" % (G + 2 * i + 1, p + i))
            a("v_lshlrev_b32 v%d, 16, v%d" % (Sv + 2 * i, x + i))
            a("v_and_b32 v%d, 0xffff0000, v%d" % (Sv + 2 * i + 1, x + i))
        for i in range(8): a("v_add_f32 v%d, v%d, v%d" % (G + i, G + i, Sv + i))
        o = 96 + 4 * qp
        for i in range(4): a("v_cvt_pk_bf16_f32 v%d, v%d, v%d" % (o + i, G + 2 * i, G + 2 * i + 1))
        a("buffer_store_dwordx4 v[%d:%d], v%d, s[%d:%d], 0 offen offset:%d" % (o, o + 3, vXO, sOUT, sOUT + 3, qp * 32))
    if os.environ.get("DBGT"):
        a("s_waitcnt vmcnt(0)")
        a("s_memrealtime s[8:9]")
        a("s_waitcnt lgkmcnt(0)")
        a("s_sub_u32 s8, s8, s100")
        a("s_lshr_b32 s9, s2, 5")
        a("s_lshl_b32 s9, s9, 3")
        a("s_add_u32 s9, s9, 4")
        a("s_and_b32 s10, s2, 31")
        a("s_add_u32 s10, s10, s%d" % sWAVE)
        a("s_cmp_eq_u32 s10, 0")
        a("s_cselect_b32 s9, s9, 0x1000")
        a("v_mov_b32 v1, s8")
        a("v_mov_b32 v2, 0")
        a("buffer_store_dword v1, v2, s[%d:%d], s9 offen" % (sDBG, sDBG + 3))
    stamp(a, 14, s0=98)
    if STAMPS:
        a("s_waitcnt vmcnt(0)")
        stamp(a, 15, s0=98)
    stamp_flush(a, 0, sWAVE, sWS, s0=98)
    a("s_endpgm")

L_FC = 0
L_COL = 63488
def build_side(a):
    sCOL, sRE, sIM = 40, 41, 42
    srd(a, 4, 50, S * 225 * 2)
    srd(a, 8, 52, S * 225 * 2)
    a("s_sub_u32 s%d, s2, 224" % sCOL)
    a("s_lshl_b32 s%d, s%d, 3" % (sCOL, sCOL))
    a("s_add_u32 s%d, s%d, s%d" % (sCOL, sCOL, sWAVE))
    a("s_lshr_b32 s49, s%d, 4" % sCOL)
    a("s_bfe_u32 s50, s%d, 0x20002" % sCOL)
    a("s_and_b32 s51, s%d, 3" % sCOL)
    a("s_lshl_b32 s52, s51, 6")
    a("v_add_u32 v1, s52, v0")
    a("v_lshlrev_b32 v2, 1, v1")
    a("s_lshl_b32 s52, s49, 7")
    a("s_lshl_b32 s53, s50, 3")
    a("s_add_u32 s52, s52, s53")
    a("s_mul_i32 s52, s52, 450")
    for jj in range(4): a("s_add_u32 s%d, s52, %d" % (56 + jj, jj * 14400))
    NCL = SYNC_BYTES // 262144
    a("s_mul_i32 s60, s%d, %d" % (sCOL, NCL * 1024))
    a("s_add_u32 s60, s60, %d" % WS_SYNC)
    a("v_lshlrev_b32 v4, 4, v0")
    for i in range(4): a("v_mov_b32 v%d, -1" % (8 + i))
    for i in range(NCL):
        a("buffer_store_dwordx4 v[8:11], v4, s[%d:%d], s60 offen offset:%d %s" % (sWS, sWS + 3, i * 1024, SC))
    a("v_mov_b32 v4, 0")
    a("v_mov_b32 v6, %d" % 140000)
    a("ds_write_b32 v6, v4")
    a("s_sub_u32 s60, s2, 224")
    a("s_lshl_b32 s61, s60, %d" % LGF)
    a("s_lshl_b32 s14, s60, 3")
    a("s_add_u32 s60, s61, %d" % WS_WMAX)
    a("s_add_u32 s61, s61, %d" % WS_FZ)
    RR, RI = 16, 48
    for i in range(8):
        for jj in range(4):
            a("buffer_load_ushort v%d, v2, s[4:7], s%d offen offset:%d" % (RR + 4 * i + jj, 56 + jj, i * 450))
            a("buffer_load_ushort v%d, v2, s[8:11], s%d offen offset:%d" % (RI + 4 * i + jj, 56 + jj, i * 450))
        if i == 3:
            a("s_waitcnt vmcnt(32) lgkmcnt(0)")
            a("s_barrier")
            lab = a.newlabel("MK_snf")
            a("s_cmp_lg_u32 s%d, 0" % sWAVE)
            a("s_cbranch_scc1 %s" % lab)
            a("v_mov_b32 v5, 1")
            a("buffer_store_dword v5, v4, s[%d:%d], s14 offen %s" % (sDBG, sDBG + 3, SC))
            a.label(lab)
    a("s_lshl_b32 s52, s49, 5")
    a("s_add_u32 s52, s52, s53")
    a("s_lshl_b32 s52, s52, 4")
    a("s_add_u32 s52, s52, %d" % WS_WT)
    a("s_lshl_b32 s63, s51, 6")
    a("v_and_b32 v6, 15, v0")
    a("v_add_u32 v6, s63, v6")
    a("v_lshrrev_b32 v7, 4, v0")
    a("v_lshlrev_b32 v7, 4, v7")
    a("v_mov_b32 v12, 0x7f000000")
    for n in range(4):
        a("v_add_u32 v13, %d, v6" % (16 * n))
        a("v_lshl_add_u32 v%d, v13, 13, v7" % (8 + n))
        a("v_cmp_gt_u32 vcc, 225, v13")
        a("v_cndmask_b32 v%d, v12, v%d, vcc" % (8 + n, 8 + n))
    a("v_mov_b32 v5, 0")
    a("s_mov_b32 s62, 0x7fff7fff")
    a("s_waitcnt vmcnt(0)")
    for hf in range(2):
        for i in range(4 * hf, 4 * hf + 4):
            for jj in range(4):
                r = RR + 4 * i + jj
                a("v_lshl_or_b32 v%d, v%d, 16, v%d" % (r, RI + 4 * i + jj, r))
                a("v_and_b32 v6, s62, v%d" % r)
                a("v_pk_max_u16 v5, v5, v6")
        Q = [RR + 16 * hf + 4 * p for p in range(4)]
        for jj in range(4):
            a("v_permlane32_swap_b32 v%d, v%d" % (Q[0] + jj, Q[2] + jj))
            a("v_permlane32_swap_b32 v%d, v%d" % (Q[1] + jj, Q[3] + jj))
        for jj in range(4):
            a("v_permlane16_swap_b32 v%d, v%d" % (Q[0] + jj, Q[1] + jj))
            a("v_permlane16_swap_b32 v%d, v%d" % (Q[2] + jj, Q[3] + jj))
        for n in range(4):
            a("buffer_store_dwordx4 v[%d:%d], v%d, s[%d:%d], s52 offen offset:%d %s" % (Q[n], Q[n] + 3, 8 + n, sWS, sWS + 3, hf * 64, SC))
    a("v_lshlrev_b32 v1, 4, v0")
    a("s_lshl_b32 s48, s%d, 10" % sWAVE)
    a("s_add_u32 s49, s48, %d" % TAB_FFT)
    a("v_lshrrev_b32 v6, 16, v5")
    a("v_and_b32 v5, 0xffff, v5")
    a("v_max_u32 v5, v5, v6")
    for x in (1, 2, 4, 8, 16):
        a("ds_swizzle_b32 v6, v5 offset:0x%x" % ((x << 10) | 0x1f))
        a("v_max_u32 v5, v5, v6")
    a("v_mov_b32 v6, v5")
    a("v_permlane32_swap_b32 v5, v6")
    a("v_max_u32 v5, v5, v6")
    a("v_mov_b32 v6, %d" % 140000)
    a("ds_max_u32 v6, v5")
    a("s_waitcnt vmcnt(0) lgkmcnt(0)")
    a("s_barrier")
    stamp(a, 1, s0=98)
    a.auto(False)
    a("s_cmp_lg_u32 s%d, 0" % sWAVE)
    a("s_cbranch_scc1 MK_snw")
    hs_poll(a, "MK_shs0", 8, 9, 4)
    a("ds_read_b32 v5, v6")
    a("s_waitcnt lgkmcnt(0)")
    a("buffer_store_dword v5, v4, s[%d:%d], s60 offen %s" % (sWS, sWS + 3, SC))
    a.label("MK_snw")
    a.auto(True)
    for i in range(8):
        if i == 7:
            a("s_cmp_ge_u32 s%d, 6" % sWAVE)
            a("s_cbranch_scc1 MK_fskip")
        a("s_add_u32 m0, s48, %d" % (L_FC + i * 8192))
        a("buffer_load_dwordx4 v1, s[%d:%d], s49 offen lds" % (sTAB, sTAB + 3))
        a("s_add_u32 s49, s49, 8192")
    a.label("MK_fskip")
    a("s_waitcnt vmcnt(0)")
    a("s_barrier")
    a("s_cmp_gt_u32 s%d, 224" % sCOL)
    a("s_cbranch_scc1 MK_fdone")
    a.auto(False)
    hs_poll(a, "MK_spollf", 8, 9, 16)
    a("s_mov_b32 s55, %d" % WS_WMAX)
    a("v_and_b32 v8, 31, v0")
    a("v_lshlrev_b32 v8, %d, v8" % LGF)
    a.label("MK_spollw")
    a("buffer_load_dword v4, v8, s[%d:%d], s55 offen %s" % (sWS, sWS + 3, SC))
    a("s_waitcnt vmcnt(0)")
    a("v_cmp_lt_u32 vcc, 0xffff, v4")
    spin_check(a, "MK_spollw", "MK_spollw", 16)
    a.auto(True)
    WR = 200
    a("s_lshl_b32 s53, s%d, 13" % sCOL)
    a("s_add_u32 s53, s53, %d" % WS_WT)
    a("s_add_u32 s54, s53, 4096")
    for i in range(8):
        a("buffer_load_dwordx4 v[%d:%d], v1, s[%d:%d], s%d offen offset:%d %s" % (WR + 4 * i, WR + 4 * i + 3, sWS, sWS + 3, 53 + i // 4, (i % 4) * 1024, SC))
    for x in (1, 2, 4, 8, 16):
        a("ds_swizzle_b32 v5, v4 offset:0x%x" % ((x << 10) | 0x1f))
        a("v_max_u32 v4, v4, v5")
    a("v_mov_b32 v5, v4")
    a("v_permlane32_swap_b32 v4, v5")
    a("v_max_u32 v4, v4, v5")
    a("v_lshrrev_b32 v4, 7, v4")
    a("v_max_u32 v4, 1, v4")
    a("v_min_u32 v4, 252, v4")
    a("v_sub_u32 v5, 250, v4")
    a("v_max_i32 v5, 1, v5")
    a("v_lshlrev_b32 v3, 23, v5")
    a("s_mov_b32 s55, %d" % WS_SC)
    a("s_cmp_eq_u32 s%d, 0" % sCOL)
    a("s_cselect_b32 s55, s55, 0x7f000000")
    a("v_mov_b32 v5, 0")
    a("buffer_store_dword v3, v5, s[%d:%d], s55 offen %s" % (sWS, sWS + 3, SC))
    a("s_lshl_b32 s%d, s%d, 1" % (sRE, sCOL))
    a("s_add_u32 s%d, s%d, 1" % (sIM, sRE))
    a("s_cmp_eq_u32 s%d, 224" % sCOL)
    a("s_cselect_b32 s%d, 1, s%d" % (sRE, sRE))
    a("s_cselect_b32 s%d, 4000, s%d" % (sIM, sIM))
    a("s_cmp_eq_u32 s%d, 0" % sCOL)
    a("s_cselect_b32 s%d, 4000, s%d" % (sIM, sIM))
    a("s_lshr_b32 s56, s%d, 5" % sRE)
    a("s_lshl_b32 s56, s56, %d" % (6 + LGF))
    a("s_add_u32 s56, s56, %d" % WS_FY)
    a("s_mul_i32 s%d, s%d, %d" % (sRE, sRE, YSTR))
    a("s_mul_i32 s%d, s%d, %d" % (sIM, sIM, YSTR))
    a("s_lshl_b32 s50, s%d, 13" % sWAVE)
    a("s_add_u32 s50, s50, %d" % L_COL)
    a("s_add_u32 s51, s%d, %d" % (sRE, WS_YT))
    a("s_add_u32 s52, s%d, %d" % (sIM, WS_YT))
    vT = 2
    a("v_lshrrev_b32 v8, 5, v0")
    a("v_bfe_u32 v9, v0, 2, 2")
    a("v_lshl_add_u32 v%d, v8, 2, v9" % vT)
    a("v_lshlrev_b32 v%d, 7, v%d" % (vT, vT))
    a("v_bfe_u32 v9, v0, 4, 1")
    a("v_lshl_add_u32 v%d, v9, 5, v%d" % (vT, vT))
    a("v_and_b32 v9, 3, v0")
    a("v_lshl_add_u32 v%d, v9, 3, v%d" % (vT, vT))
    a("v_add_u32 v%d, s50, v%d" % (vT, vT))
    a.auto(False)
    a("v_lshlrev_b32 v8, %d, v0" % LGF)
    a.label("MK_spollA")
    a("buffer_load_dword v9, v8, s[%d:%d], s56 offen %s" % (sWS, sWS + 3, SC))
    a("s_waitcnt vmcnt(0)")
    a("v_cmp_ne_u32 vcc, 1, v9")
    spin_check(a, "MK_spollA", "MK_spollA", 16)
    stamp(a, 2, s0=98)
    a("s_mov_b32 m0, s50")
    for i in range(4): a("buffer_load_dwordx4 v1, s[%d:%d], s51 offen offset:%d %s lds" % (sWS, sWS + 3, i * 1024, SC))
    a("s_add_u32 m0, s50, 4096")
    for i in range(4): a("buffer_load_dwordx4 v1, s[%d:%d], s52 offen offset:%d %s lds" % (sWS, sWS + 3, i * 1024, SC))
    a("s_waitcnt vmcnt(0)")
    a.auto(True)
    stamp(a, 3, s0=98)
    XR, XI = 16, 32
    AR, AI = 48, 80
    CF = 112
    TW = 160
    TMP = 192
    cfi = [0]
    def cfrag(off):
        b = CF + 4 * (cfi[0] % 12); cfi[0] += 1
        a("ds_read_b128 v[%d:%d], v1 offset:%d" % (b, b + 3, off))
        return b
    def mf(d, x, y, first):
        c = "0" if first else "v[%d:%d]" % (d, d + 15)
        a("v_mfma_f32_32x32x16_f16 v[%d:%d], v[%d:%d], v[%d:%d], %s" % (d, d + 15, x, x + 3, y, y + 3, c))
    F1 = lambda kind, g: L_FC + FFT_F1 + (kind * 2 + g) * 1024
    F2 = lambda kind, t, g: L_FC + FFT_F2 + ((kind * 2 + t) * 4 + g) * 1024
    for part, base in ((0, XR), (1, XI)):
        for mt in range(2):
            for g in range(2):
                b = base + (mt * 2 + g) * 4
                off = part * 4096 + (16 * g) * 128 + mt * 64
                a("ds_read_b64_tr_b16 v[%d:%d], v%d offset:%d" % (b, b + 1, vT, off))
                a("ds_read_b64_tr_b16 v[%d:%d], v%d offset:%d" % (b + 2, b + 3, vT, off + 1024))
    f1 = {(k, g): cfrag(F1(k, g)) for k in range(3) for g in range(2)}
    for mt in range(2):
        for g in range(2):
            xr = XR + (mt * 2 + g) * 4; xi = XI + (mt * 2 + g) * 4
            mf(AR + 16 * mt, xr, f1[(0, g)], g == 0)
            mf(AI + 16 * mt, xi, f1[(0, g)], g == 0)
            mf(AR + 16 * mt, xi, f1[(1, g)], False)
            mf(AI + 16 * mt, xr, f1[(2, g)], False)
    def twiddle(tab, sign):
        def ld(i):
            b = TW + 8 * (i % 4)
            a("ds_read_b128 v[%d:%d], v1 offset:%d" % (b, b + 3, L_FC + tab + i * 2048))
            a("ds_read_b128 v[%d:%d], v1 offset:%d" % (b + 4, b + 7, L_FC + tab + i * 2048 + 1024))
        for i in range(3): ld(i)
        for i in range(8):
            if i + 3 < 8: ld(i + 3)
            c = TW + 8 * (i % 4); s_ = c + 4
            r = AR + 4 * i; m = AI + 4 * i
            for j in range(4): a("v_mul_f32 v%d, v%d, v%d" % (TMP + j, r + j, c + j))
            for j in range(4): a("v_mul_f32 v%d, v%d, v%d" % (TMP + 4 + j, m + j, c + j))
            sg1 = "" if sign < 0 else "-"
            sg2 = "-" if sign < 0 else ""
            for j in range(4): a("v_fma_f32 v%d, %sv%d, v%d, v%d" % (TMP + j, sg1, m + j, s_ + j, TMP + j))
            for j in range(4): a("v_fma_f32 v%d, %sv%d, v%d, v%d" % (TMP + 4 + j, sg2, r + j, s_ + j, TMP + 4 + j))
            a("v_cvt_pk_f16_f32 v%d, v%d, v%d" % (XR + 2 * i, TMP, TMP + 1))
            a("v_cvt_pk_f16_f32 v%d, v%d, v%d" % (XR + 2 * i + 1, TMP + 2, TMP + 3))
            a("v_cvt_pk_f16_f32 v%d, v%d, v%d" % (XI + 2 * i, TMP + 4, TMP + 5))
            a("v_cvt_pk_f16_f32 v%d, v%d, v%d" % (XI + 2 * i + 1, TMP + 6, TMP + 7))
    twiddle(FFT_TWF, -1)
    def stage64(const_is_A, ksin_r, ksin_i):
        for t in range(2):
            fr = {}
            for g in range(2):
                for k in range(3): fr[(k, g)] = cfrag(F2(k, t, g))
            for g in range(4):
                if g + 2 < 4:
                    for k in range(3): fr[(k, g + 2)] = cfrag(F2(k, t, g + 2))
                dr = XR + 4 * g; di = XI + 4 * g
                def mm(d, cst, dat, first):
                    if const_is_A: mf(d, cst, dat, first)
                    else: mf(d, dat, cst, first)
                mm(AR + 16 * t, fr[(0, g)], dr, g == 0)
                mm(AI + 16 * t, fr[(0, g)], di, g == 0)
                mm(AR + 16 * t, fr[(ksin_r, g)], di, False)
                mm(AI + 16 * t, fr[(ksin_i, g)], dr, False)
    stage64(True, 1, 2)
    for i in range(8):
        r = AR + 4 * i; m = AI + 4 * i; w = WR + 4 * i
        c = TW; s_ = TW + 4
        for j in range(4): a("v_lshlrev_b32 v%d, 16, v%d" % (c + j, w + j))
        for j in range(4): a("v_and_b32 v%d, 0xffff0000, v%d" % (s_ + j, w + j))
        for j in range(4): a("v_mul_f32 v%d, v%d, v3" % (c + j, c + j))
        for j in range(4): a("v_mul_f32 v%d, v%d, v3" % (s_ + j, s_ + j))
        for j in range(4): a("v_mul_f32 v%d, v%d, v%d" % (TMP + j, r + j, c + j))
        for j in range(4): a("v_mul_f32 v%d, v%d, v%d" % (TMP + 4 + j, m + j, c + j))
        for j in range(4): a("v_fma_f32 v%d, -v%d, v%d, v%d" % (TMP + j, m + j, s_ + j, TMP + j))
        for j in range(4): a("v_fma_f32 v%d, v%d, v%d, v%d" % (TMP + 4 + j, r + j, s_ + j, TMP + 4 + j))
        a("v_cvt_pk_f16_f32 v%d, v%d, v%d" % (XR + 2 * i, TMP, TMP + 1))
        a("v_cvt_pk_f16_f32 v%d, v%d, v%d" % (XR + 2 * i + 1, TMP + 2, TMP + 3))
        a("v_cvt_pk_f16_f32 v%d, v%d, v%d" % (XI + 2 * i, TMP + 4, TMP + 5))
        a("v_cvt_pk_f16_f32 v%d, v%d, v%d" % (XI + 2 * i + 1, TMP + 6, TMP + 7))
    stage64(False, 2, 1)
    twiddle(FFT_TWI, +1)
    f1 = {(k, g): cfrag(F1(k, g)) for k in range(3) for g in range(2)}
    for nt in range(2):
        for g in range(2):
            xr = XR + (nt * 2 + g) * 4; xi = XI + (nt * 2 + g) * 4
            mf(AR + 16 * nt, xr, f1[(0, g)], g == 0)
            mf(AI + 16 * nt, xi, f1[(0, g)], g == 0)
            mf(AR + 16 * nt, xi, f1[(2, g)], False)
            mf(AI + 16 * nt, xr, f1[(1, g)], False)
    a("s_mov_b32 s56, 0x%08x" % f32bits(A5 * 2))
    a("s_cmp_ge_u32 s%d, %d" % (sIM, 4000 * YSTR))
    a("s_cselect_b32 s56, 0x%08x, s56" % f32bits(A5))
    a("v_and_b32 v8, 15, v0")
    a("v_lshlrev_b32 v8, 7, v8")
    seg_off(a, 9, 10)
    a("v_add_u32 v8, v8, v9")
    a("v_add_u32 v9, 2048, v8")
    a("s_add_u32 s51, s%d, %d" % (sRE, WS_ZT))
    a("s_add_u32 s52, s%d, %d" % (sIM, WS_ZT))
    for part, acc, sreg in ((0, AR, 51), (1, AI, 52)):
        for nt in range(2):
            c = acc + 16 * nt
            o = XR + 16 * part + 8 * nt
            for j in range(16): a("v_mul_f32 v%d, s56, v%d" % (c + j, c + j))
            for j in range(8): a("v_cvt_pk_f16_f32 v%d, v%d, v%d" % (o + j, c + 2 * j, c + 2 * j + 1))
            store64(a, o, o + 4, 8, 9, sWS, "s%d" % sreg, nt * 64)
    stamp(a, 4, s0=98)
    a("s_waitcnt vmcnt(0)")
    a.label("MK_fdone")
    a("s_barrier")
    a("s_cmp_lg_u32 s%d, 0" % sWAVE)
    a("s_cselect_b32 s61, 0x7f000000, s61")
    a("v_mov_b32 v4, 0")
    a("v_mov_b32 v5, 1")
    a("buffer_store_dword v5, v4, s[%d:%d], s61 offen %s" % (sWS, sWS + 3, SC))
    stamp(a, 5, s0=98)
    stamp_flush(a, 0, sWAVE, sWS, s0=98)
```
